```python
import torch

def _softmax(x, axis=-1):
    return torch.softmax(x, dim=axis)

def _gelu(x):
    return torch.nn.functional.gelu(x, approximate='tanh')

def _silu(x):
    return torch.nn.functional.silu(x)

def _sigmoid(x):
    return torch.sigmoid(x)

def _layernorm(x, axis=-1, eps=1e-05):
    m = x.mean(dim=axis, keepdim=True)
    v = x.var(dim=axis, keepdim=True, unbiased=False)
    return (x - m) / torch.sqrt(v + eps)

def _scatter_add(tgt, idx, src, axis=0):
    return tgt.clone().index_add_(axis, idx, src)

def _segment_sum(src, seg, n):
    out = torch.zeros((n,) + src.shape[1:], dtype=src.dtype)
    return out.index_add_(0, seg, src)

def _pad(x, pw):
    flat = tuple((v for pair in reversed(pw) for v in pair))
    return torch.nn.functional.pad(x, flat)
kernel_name = 'standalone__molecular_angular_painn__graph'

def setup_inputs():

    _w = lambda a: (lambda t: t.to(torch.bfloat16) if t.is_floating_point() else t)(torch.as_tensor(a))
    N, deg, D = (12500, 32, 128)
    n_rbf = max(4, 4)
    E = N * deg
    cutoff = 5.0
    freqs = (torch.arange(1, n_rbf + 1) * torch.pi / cutoff).to(float)
    return {'sv': _w((lambda *s: torch.randn(*s, dtype=torch.bfloat16) * 0.4)(N, 4, D) * 0.3), 'pos': _w((lambda *s: torch.randn(*s, dtype=torch.bfloat16) * 3.2)(N, 3) * 1.2), 'src': _w((lambda lo, hi, *s: torch.randint(lo, hi, s))(0, N, E).to(torch.int64)), 'dst': _w((lambda lo, hi, *s: torch.randint(lo, hi, s))(0, N, E).to(torch.int64)), 'freqs': _w(freqs), 'w_phi1': _w((lambda *s: torch.randn(*s, dtype=torch.bfloat16) * 3.2)(D, D) / D ** 0.5), 'w_phi2': _w((lambda *s: torch.randn(*s, dtype=torch.bfloat16) * 3.2)(D, 3 * D) / D ** 0.5), 'w_rbf': _w((lambda *s: torch.randn(*s, dtype=torch.bfloat16) * 3.2)(n_rbf, 3 * D) / n_rbf ** 0.5)}

def reference(sv, pos, src, dst, freqs, w_phi1, w_phi2, w_rbf):
    N, _, D = sv.shape
    E = src.shape[0]
    PI, cutoff = (3.141592653589793, 5.0)
    s, v = (sv[:, 0, :].clone(), sv[:, 1:, :].clone())
    r_vec = pos[src] - pos[dst]
    d = torch.sqrt((r_vec * r_vec).sum(-1) + 1e-08)
    r_hat = r_vec / d[:, None]
    rbf = torch.sin(d[:, None] * freqs[None, :]) / d[:, None]
    fcut = 0.5 * (torch.cos(PI * d / cutoff) + 1.0)
    fcut = torch.where(d < cutoff, fcut, 0.0 * d)
    Wf = rbf @ w_rbf * fcut[:, None]
    phi = (_silu(s @ w_phi1) @ w_phi2)[src]
    m = phi * Wf
    m_s, m_vv, m_vr = (m[:, :D].clone(), m[:, D:2 * D].clone(), m[:, 2 * D:].clone())
    ds = _segment_sum(m_s, dst, N)
    dv_e = m_vv[:, None, :] * v[src] + m_vr[:, None, :] * r_hat[:, :, None]
    dv = _segment_sum(dv_e.reshape(E, 3 * D), dst, N).reshape(N, 3, D)
    return sv + torch.concatenate([ds[:, None, :], dv], axis=1)
```

```python
N = 12500; E = 400000; D = 128
NBK = 500
BN = 25
NCH = 250
CH = 1600
CAP = 6
WS_H = 0
H_BYTES = N * 256
WS_W2 = 0x310000
W2_WSTRIDE = 25 * 1024
W2_BYTES = 4 * W2_WSTRIDE
WS_WR = WS_W2 + W2_BYTES
WR_BYTES = 4 * 3 * 512
WS_CELL = 0x340000
CELL_BYTES = NCH * NBK * 16
WS_OVF = 0x540000
OVF_STRIDE = 2048 * 4
OVF_BYTES = NCH * OVF_STRIDE
WS_USED = WS_OVF + OVF_BYTES
assert WS_WR + WR_BYTES <= WS_CELL and WS_CELL + CELL_BYTES <= WS_OVF
K1_EDGE = NCH
K1_GEMM = 196
K1_REL = 24
K1_GRID = K1_EDGE + K1_GEMM + K1_REL

def pi_ch(n):
    g = n >> 3; h = (n >> 2) & 1; i = n & 3
    return 16 * h + 4 * g + i

def hidden_of(ks, h, j):
    return 32 * (ks >> 1) + 8 * (2 * h + (j >> 2)) + 4 * (ks & 1) + (j & 3)
```

```python
from common import *

def srd(A, d, lo, hi, nbytes):
    A(f"  s_mov_b32 s{d}, s{lo}")
    A(f"  s_mov_b32 s{d+1}, s{hi}")
    A(f"  s_mov_b32 s{d+2}, {nbytes}")
    A(f"  s_mov_b32 s{d+3}, 0x20000")

HIST = 0
SLOT = 2048
START = 14080
MISC = 16128
K1_LDS = 40960

def gen_k1(A):
    A(".globl k1_kernel\n.p2align 8\n.type k1_kernel,@function\nk1_kernel:")
    A(f"  s_cmp_ge_u32 s2, {K1_GRID}\n  s_cbranch_scc1 K1_END")
    A("  s_load_dwordx4 s[4:7], s[0:1], 0")
    A("  s_load_dwordx4 s[8:11], s[0:1], 16")
    A("  s_load_dwordx4 s[12:15], s[0:1], 40")
    A("  s_load_dwordx2 s[16:17], s[0:1], 56")
    A("  s_load_dwordx2 s[18:19], s[0:1], 80")
    A(f"  s_cmp_ge_u32 s2, {K1_EDGE}\n  s_cbranch_scc1 K1_NOTEDGE")
    gen_edge(A)
    A("K1_NOTEDGE:")
    A(f"  s_cmp_ge_u32 s2, {K1_EDGE + K1_GEMM}\n  s_cbranch_scc1 K1_REL")
    gen_gemm(A)
    A("K1_REL:")
    gen_rel(A)
    A("K1_END:\n  s_endpgm")

def gen_edge(A):
    A("; ---------------- edge role ----------------")
    A("  v_lshlrev_b32 v1, 2, v0")
    A("  v_mov_b32 v2, 0\n  v_mov_b32 v3, 0")
    A("  v_lshlrev_b32 v4, 3, v0")
    A(f"  ds_write_b64 v4, v[2:3] offset:{HIST}")
    A(f"  v_mov_b32 v5, {MISC}")
    A("  ds_write_b64 v5, v[2:3]")
    A("  s_mul_i32 s36, s2, 6400")
    A("  s_add_u32 s37, s36, 4096")
    A("  s_lshr_b32 s38, s2, 3\n  s_and_b32 s38, s38, 3\n  s_lshl_b32 s38, s38, 15")
    A("  v_lshlrev_b32 v6, 7, v0")
    A("  s_waitcnt lgkmcnt(0)")
    srd(A, 20, 8, 9, E * 4)
    srd(A, 24, 10, 11, E * 4)
    srd(A, 28, 6, 7, N * 6)
    srd(A, 32, 18, 19, WS_USED)
    SRC0, DST0 = 10, 17
    for i in range(7):
        so = "s36" if i < 4 else "s37"
        off = (i % 4) * 1024
        A(f"  buffer_load_dword v{SRC0+i}, v1, s[20:23], {so} offen offset:{off}")
        A(f"  buffer_load_dword v{DST0+i}, v1, s[24:27], {so} offen offset:{off}")
    A("  buffer_load_dword v7, v6, s[28:31], s38 offen")
    A("  s_mov_b32 s40, 0x41c9999a")
    A("  s_movk_i32 s41, 5243")
    A("  s_mov_b32 s42, 0xffff0000")
    A("  v_mov_b32 v8, 1")
    A("  s_barrier")
    PS, PD, SHS, SHD = 24, 38, 52, 59
    AD = 66
    for i in range(7):
        n_after = (14 - 2*(i+1)) + 1 + 2*i
        A(f"  s_waitcnt vmcnt({n_after})")
        for (idx, sh, ad, dst) in ((SRC0+i, SHS+i, AD+2*i, PS+2*i), (DST0+i, SHD+i, AD+2*i+1, PD+2*i)):
            A(f"  v_mul_u32_u24 v{ad}, 6, v{idx}")
            A(f"  v_and_b32 v{sh}, 2, v{ad}")
            A(f"  v_and_b32 v{ad}, -4, v{ad}")
            A(f"  v_lshlrev_b32 v{sh}, 3, v{sh}")
            A(f"  buffer_load_dwordx2 v[{dst}:{dst+1}], v{ad}, s[28:31], 0 offen")
    HA, EN, RK = 80, 87, 94
    for i in range(7):
        A(f"  v_mul_u32_u24 v{HA+i}, s41, v{DST0+i}")
        A(f"  v_lshrrev_b32 v{HA+i}, 17, v{HA+i}")
        A(f"  v_mul_u32_u24 v9, 25, v{HA+i}")
        A(f"  v_sub_u32 v9, v{DST0+i}, v9")
        A(f"  v_lshl_or_b32 v{EN+i}, v9, 14, v{SRC0+i}")
        A(f"  v_lshlrev_b32 v{HA+i}, 2, v{HA+i}")
    A("  v_cmp_gt_u32 s[58:59], 64, v0")
    T = 101
    for i in range(7):
        A(f"  s_waitcnt vmcnt({2*(6-i)})")
        ps, pd = PS+2*i, PD+2*i
        for (p, sh, o) in ((ps, SHS+i, T), (pd, SHD+i, T+3)):
            A(f"  v_alignbit_b32 v{o+6}, v{p+1}, v{p}, v{sh}")
            A(f"  v_lshrrev_b32 v{o+2}, v{sh}, v{p+1}")
            A(f"  v_lshlrev_b32 v{o}, 16, v{o+6}")
            A(f"  v_and_b32 v{o+1}, s42, v{o+6}")
            A(f"  v_lshlrev_b32 v{o+2}, 16, v{o+2}")
        A(f"  v_sub_f32 v{T}, v{T}, v{T+3}")
        A(f"  v_sub_f32 v{T+1}, v{T+1}, v{T+4}")
        A(f"  v_sub_f32 v{T+2}, v{T+2}, v{T+5}")
        A(f"  v_mul_f32 v{T}, v{T}, v{T}")
        A(f"  v_fmac_f32 v{T}, v{T+1}, v{T+1}")
        A(f"  v_fmac_f32 v{T}, v{T+2}, v{T+2}")
        A(f"  v_cmp_gt_f32 s[{44+2*i}:{45+2*i}], s40, v{T}")
    A("  s_nop 1")
    A("  s_and_b64 s[56:57], s[56:57], s[58:59]")
    for i in range(7):
        A(f"  s_mov_b64 exec, s[{44+2*i}:{45+2*i}]")
        A(f"  ds_add_rtn_u32 v{RK+i}, v{HA+i}, v8 offset:{HIST}")
    A("  s_mov_b64 exec, -1")
    for i in range(7):
        A(f"  v_mul_u32_u24 v{AD+i}, 6, v{HA+i}")
    A("  s_waitcnt lgkmcnt(0)")
    for i in range(7):
        A(f"  v_lshl_add_u32 v{AD+i}, v{RK+i}, 2, v{AD+i}")
        A(f"  v_cmp_gt_u32 vcc, {CAP}, v{RK+i}")
        A(f"  s_and_b64 exec, vcc, s[{44+2*i}:{45+2*i}]")
        A(f"  ds_write_b32 v{AD+i}, v{EN+i} offset:{SLOT}")
        A("  s_mov_b64 exec, -1")
    A("  s_waitcnt lgkmcnt(0)")
    A("  s_barrier")
    A("  s_mov_b32 s60, 0x7ffff")
    A(f"  s_mul_i32 s61, s2, {NBK*16}")
    A(f"  s_add_u32 s61, s61, {WS_CELL}")
    A(f"  s_mul_i32 s62, s2, {OVF_STRIDE}")
    A(f"  s_add_u32 s62, s62, {WS_OVF}")
    A("  v_mul_u32_u24 v10, 24, v0")
    A("  v_lshlrev_b32 v11, 4, v0")
    for half in range(2):
        co, so = half*1024, half*256*24
        A(f"  ds_read_b32 v12, v1 offset:{HIST+co}")
        A(f"  ds_read_b64 v[14:15], v10 offset:{SLOT+so}")
        A(f"  ds_read_b64 v[16:17], v10 offset:{SLOT+so+8}")
        A(f"  ds_read_b64 v[18:19], v10 offset:{SLOT+so+16}")
        if half == 1:
            A(f"  v_cmp_gt_u32 vcc, {NBK-256}, v0\n  s_mov_b64 s[64:65], vcc")
        A("  s_waitcnt lgkmcnt(0)")
        if half == 1:
            A("  s_mov_b64 exec, s[64:65]")
        for r in range(14, 20):
            A(f"  v_and_b32 v{r}, s60, v{r}")
        A("  v_lshl_or_b32 v20, v15, 19, v14")
        A("  v_lshrrev_b32 v21, 13, v15")
        A("  v_lshl_or_b32 v21, v16, 6, v21")
        A("  v_lshl_or_b32 v21, v17, 25, v21")
        A("  v_lshrrev_b32 v22, 7, v17")
        A("  v_lshl_or_b32 v22, v18, 12, v22")
        A("  v_lshl_or_b32 v22, v19, 31, v22")
        A("  v_lshrrev_b32 v23, 1, v19")
        A(f"  v_cmp_lt_u32 vcc, {CAP}, v12")
        A("  s_and_saveexec_b64 s[66:67], vcc")
        A(f"  s_cbranch_execz K1_NOOVF{half}")
        A("  v_add_u32 v13, 1, v12")
        A(f"  v_mov_b32 v5, {MISC}")
        A("  ds_add_rtn_u32 v13, v5, v13")
        A("  ds_write_b32 v5, v8 offset:4")
        A("  s_waitcnt lgkmcnt(0)")
        A(f"  ds_write_b32 v1, v13 offset:{START+co}")
        A("  v_lshlrev_b32 v9, 2, v13")
        A("  buffer_store_dword v12, v9, s[32:35], s62 offen")
        A("  v_lshl_or_b32 v12, v13, 3, 7")
        A(f"K1_NOOVF{half}:")
        A("  s_mov_b64 exec, s[66:67]")
        A("  v_lshl_or_b32 v23, v12, 18, v23")
        A(f"  buffer_store_dwordx4 v[20:23], v11, s[32:35], s61 offen offset:{half*4096 if half*4096 < 4096 else 0}" if half == 0 else "")
        if half == 1:
            A("  v_add_u32 v11, 4096, v11")
            A("  buffer_store_dwordx4 v[20:23], v11, s[32:35], s61 offen")
            A("  s_mov_b64 exec, -1")
        else:
            A("  s_nop 1")
    A("  s_waitcnt lgkmcnt(0)")
    A("  s_barrier")
    A(f"  v_mov_b32 v5, {MISC}")
    A("  ds_read_b32 v9, v5 offset:4")
    A("  s_waitcnt lgkmcnt(0)")
    A("  v_readfirstlane_b32 s63, v9")
    A("  s_nop 3")
    A("  s_cmp_eq_u32 s63, 0\n  s_cbranch_scc1 K1_END")
    for i in range(7):
        A(f"  s_mov_b64 exec, s[{44+2*i}:{45+2*i}]")
        A(f"  ds_read_b32 v12, v{HA+i} offset:{HIST}")
        A(f"  ds_read_b32 v13, v{HA+i} offset:{START}")
        A("  s_waitcnt lgkmcnt(0)")
        A(f"  v_cmp_lt_u32 vcc, {CAP}, v12")
        A("  s_and_b64 exec, exec, vcc")
        A(f"  s_cbranch_execz K1_OV{i}")
        A(f"  v_add3_u32 v13, v13, v{RK+i}, 1")
        A("  v_lshlrev_b32 v13, 2, v13")
        A(f"  buffer_store_dword v{EN+i}, v13, s[32:35], s62 offen")
        A(f"K1_OV{i}:")
    A("  s_mov_b64 exec, -1")
    A("  s_endpgm")

def gen_gemm(A):
    A("; ---------------- H GEMM role ----------------")
    A(f"  s_sub_u32 s36, s2, {K1_EDGE}")
    A("  v_lshlrev_b32 v1, 4, v0")
    A("  v_lshrrev_b32 v2, 4, v0")
    A("  v_mul_u32_u24 v2, 320, v2")
    A("  v_and_b32 v3, 15, v0")
    A("  v_lshl_add_u32 v2, v3, 4, v2")
    A("  v_and_b32 v4, 63, v0")
    A("  v_lshrrev_b32 v5, 6, v0")
    A("  v_and_b32 v6, 31, v4")
    A("  v_lshrrev_b32 v7, 5, v4")
    A("  s_lshl_b32 s37, s36, 6")
    A("  v_add_u32 v8, s37, v6")
    A("  v_lshlrev_b32 v9, 10, v8")
    A("  v_lshl_add_u32 v9, v7, 4, v9")
    for i in range(8): A(f"  s_mov_b32 s{40+i}, {i*4096}")
    A("  s_mov_b32 s48, 32768")
    A("  s_waitcnt lgkmcnt(0)")
    srd(A, 20, 12, 13, 128*128*2)
    srd(A, 24, 4, 5, N*1024)
    srd(A, 28, 18, 19, H_BYTES)
    W = 16
    for i in range(8):
        A(f"  buffer_load_dwordx4 v[{W+4*i}:{W+4*i+3}], v1, s[20:23], s{40+i} offen")
    B = 48
    for nt in range(2):
        for ks in range(8):
            r = B + (nt*8+ks)*4
            so = "0" if nt == 0 else "s48"
            A(f"  buffer_load_dwordx4 v[{r}:{r+3}], v9, s[24:27], {so} offen offset:{ks*32}")
    A("  v_bfe_u32 v10, v4, 2, 2")
    A("  v_lshl_add_u32 v10, v7, 3, v10")
    A("  v_mul_u32_u24 v10, 320, v10")
    A("  v_bfe_u32 v11, v4, 4, 1")
    A("  v_lshlrev_b32 v11, 5, v11")
    A("  v_lshl_add_u32 v11, v5, 6, v11")
    A("  v_and_b32 v12, 3, v4")
    A("  v_lshl_add_u32 v11, v12, 3, v11")
    A("  v_add_u32 v10, v10, v11")
    A("  v_lshlrev_b32 v13, 8, v8")
    A("  v_lshl_add_u32 v13, v5, 6, v13")
    A("  v_lshl_add_u32 v13, v7, 5, v13")
    for i in range(8):
        A(f"  s_waitcnt vmcnt({16 + 7 - i})")
        A(f"  ds_write_b128 v2, v[{W+4*i}:{W+4*i+3}] offset:{i*5120}")
    A("  s_waitcnt lgkmcnt(0)")
    A("  s_barrier")
    AF = 112
    for ks in range(8):
        r = AF + 4*ks
        A(f"  ds_read_b64_tr_b16 v[{r}:{r+1}], v10 offset:{ks*5120}")
        A(f"  ds_read_b64_tr_b16 v[{r+2}:{r+3}], v10 offset:{ks*5120+1280}")
    Dr = 144
    A("  s_waitcnt vmcnt(0)")
    for ks in range(8):
        A(f"  s_waitcnt lgkmcnt({2*(7-ks)})")
        for nt in range(2):
            d = Dr + 16*nt
            c = "0" if ks == 0 else f"v[{d}:{d+15}]"
            A(f"  v_mfma_f32_32x32x16_bf16 v[{d}:{d+15}], v[{AF+4*ks}:{AF+4*ks+3}], v[{B+(nt*8+ks)*4}:{B+(nt*8+ks)*4+3}], {c}")
    A("  s_mov_b32 s50, 0xffff0000")
    A("  s_mov_b32 s51, 0xbfb8aa3b")
    A("  s_nop 7\n  s_nop 3")
    for nt in range(2):
        d = Dr + 16*nt
        P = 16
        X = 24; Et = 48
        for q in range(8):
            A(f"  v_cvt_pk_bf16_f32 v{P+q}, v{d+2*q}, v{d+2*q+1}")
        for q in range(8):
            A(f"  v_lshlrev_b32 v{X+2*q}, 16, v{P+q}")
            A(f"  v_and_b32 v{X+2*q+1}, s50, v{P+q}")
        for r in range(16): A(f"  v_mul_f32 v{Et+r}, s51, v{X+r}")
        for r in range(16): A(f"  v_exp_f32 v{Et+r}, v{Et+r}")
        for r in range(16): A(f"  v_add_f32 v{Et+r}, 1.0, v{Et+r}")
        for r in range(16): A(f"  v_rcp_f32 v{Et+r}, v{Et+r}")
        A("  s_nop 0")
        for r in range(16): A(f"  v_mul_f32 v{X+r}, v{X+r}, v{Et+r}")
        O = 64 + 8*nt
        for q in range(8):
            A(f"  v_cvt_pk_bf16_f32 v{O+q}, v{X+2*q}, v{X+2*q+1}")
        if nt == 0:
            A(f"  buffer_store_dwordx4 v[{O}:{O+3}], v13, s[28:31], 0 offen")
            A(f"  buffer_store_dwordx4 v[{O+4}:{O+7}], v13, s[28:31], 0 offen offset:16")
        else:
            A("  v_add_u32 v13, 8192, v13")
            A(f"  buffer_store_dwordx4 v[{O}:{O+3}], v13, s[28:31], 0 offen")
            A(f"  buffer_store_dwordx4 v[{O+4}:{O+7}], v13, s[28:31], 0 offen offset:16")
    A("  s_endpgm")

def gen_rel(A):
    A("; ---------------- weight relayout role ----------------")
    A(f"  s_sub_u32 s36, s2, {K1_EDGE+K1_GEMM}")
    A("  s_and_b32 s37, s36, 3")
    A("  s_lshr_b32 s38, s36, 2")
    A("  s_cmp_ge_u32 s38, 3")
    A("  s_cselect_b32 s39, 1, 0")
    A("  s_mul_i32 s40, s39, 3")
    A("  s_sub_u32 s38, s38, s40")
    A("  v_and_b32 v4, 63, v0")
    A("  v_lshrrev_b32 v5, 6, v0")
    A("  s_lshl_b32 s40, s39, 2")
    A("  v_add_u32 v5, s40, v5")
    A("  v_and_b32 v6, 31, v4")
    A("  v_lshrrev_b32 v7, 5, v4")
    A("  v_bfe_u32 v8, v6, 2, 1")
    A("  v_lshlrev_b32 v8, 4, v8")
    A("  v_lshrrev_b32 v9, 3, v6")
    A("  v_lshl_add_u32 v8, v9, 2, v8")
    A("  v_and_b32 v9, 3, v6")
    A("  v_add_u32 v8, v8, v9")
    A("  s_lshl_b32 s41, s38, 7\n  s_lshl_b32 s42, s37, 5\n  s_add_u32 s41, s41, s42")
    A("  v_add_u32 v8, s41, v8")
    A("  v_lshlrev_b32 v8, 1, v8")
    A("  v_lshrrev_b32 v9, 1, v5")
    A("  v_lshlrev_b32 v9, 5, v9")
    A("  v_lshl_add_u32 v9, v7, 4, v9")
    A("  v_and_b32 v10, 1, v5")
    A("  v_lshl_add_u32 v9, v10, 2, v9")
    A("  v_mul_u32_u24 v9, 768, v9")
    A("  v_add_u32 v9, v9, v8")
    A("  v_add_u32 v10, 6144, v9")
    A("  s_mul_i32 s43, s37, 3\n  s_add_u32 s43, s43, s38")
    A(f"  s_mul_i32 s44, s37, {W2_WSTRIDE}")
    A("  s_lshl_b32 s50, s38, 13")
    A("  s_add_u32 s44, s44, s50")
    A(f"  s_add_u32 s44, s44, {WS_W2}")
    A("  v_lshlrev_b32 v11, 10, v5")
    A("  v_lshl_add_u32 v11, v4, 4, v11")
    A("  s_waitcnt lgkmcnt(0)")
    srd(A, 20, 14, 15, 128*384*2)
    srd(A, 24, 16, 17, 4*384*2)
    srd(A, 28, 18, 19, WS_USED)
    for j in range(8):
        base = "v9" if j < 4 else "v10"
        A(f"  buffer_load_ushort v{20 + j}, {base}, s[20:23], 0 offen offset:{(j % 4) * 768}")
    for k in range(4): A(f"  v_mov_b32 v{28+k}, 0")
    A("  v_cmp_eq_u32 vcc, 0, v5")
    A("  s_and_saveexec_b64 s[46:47], vcc")
    A("  s_cbranch_execz K1_REL2")
    A("  v_cmp_gt_u32 vcc, 32, v4")
    A("  s_and_saveexec_b64 s[48:49], vcc")
    for k in range(4):
        A(f"  buffer_load_ushort v{28 + k}, v8, s[24:27], 0 offen offset:{k * 768}")
    A("  s_mov_b64 exec, s[48:49]")
    A("  s_lshl_b32 s45, s43, 9")
    A(f"  s_add_u32 s45, s45, {WS_WR}")
    A("  v_lshlrev_b32 v18, 3, v4")
    A("  s_waitcnt vmcnt(0)")
    A("  v_lshl_or_b32 v16, v29, 16, v28")
    A("  v_lshl_or_b32 v17, v31, 16, v30")
    A("  buffer_store_dwordx2 v[16:17], v18, s[28:31], s45 offen")
    A("K1_REL2:")
    A("  s_mov_b64 exec, s[46:47]")
    A("  s_waitcnt vmcnt(0)")
    for q in range(4): A(f"  v_lshl_or_b32 v{12+q}, v{21+2*q}, 16, v{20+2*q}")
    A("  buffer_store_dwordx4 v[12:15], v11, s[28:31], s44 offen")
    A("  s_endpgm")
```

```python
from common import *
from k1 import srd

HSZ = 8 * 1056
VOFF = HSZ
SLOTSZ = HSZ + 8 * 3072
MB = 0
SEL = MB; SEL_R = 1600
NREG = 6
GB = SEL + NREG * SEL_R; G_R = 256
RB = GB + NREG * G_R; R_R = 384
LIST = RB + NREG * R_R
TOT = LIST + 7 * 128
RING = (TOT + 16 + 63) // 64 * 64
K2_LDS = RING + 2 * SLOTSZ
ZB = LIST - MB
assert ZB % 16 == 0 and K2_LDS <= 81920
LCAP = NREG * 32

vT = 0
aH, aV, aS, aG, aR, aL = 1, 2, 3, 4, 5, 6
cH, cV0, cV1 = 7, 8, 9
t0 = 10
WR = 16
GF = 22
HF = 24
WF = 32
PS, PV, PR = 48, 64, 80
ACC = 96
W2 = 160

def r4(b): return f"v[{b}:{b+3}]"
def r2(b): return f"v[{b}:{b+1}]"
def r16(b): return f"v[{b}:{b+15}]"

def lds_fill(A, tag):
    A(f"  v_mov_b32 v24, 0\n  v_mov_b32 v25, 0\n  v_mov_b32 v26, 0\n  v_mov_b32 v27, 0")
    A(f"  v_lshlrev_b32 v28, 4, v{vT}")
    A(f"  v_add_u32 v28, {MB}, v28")
    n16 = ZB // 16
    full = n16 // 256
    for i in range(full):
        A(f"  ds_write_b128 v28, v[24:27] offset:{i*4096}")
    rem = n16 - full*256
    A(f"  v_mov_b32 v29, 0x3fff")
    A(f"  v_lshlrev_b32 v30, 2, v{vT}")
    A(f"  v_add_u32 v30, {LIST}, v30")
    A(f"  v_cmp_gt_u32 vcc, {rem}, v{vT}")
    A("  s_mov_b64 exec, vcc")
    A(f"  ds_write_b128 v28, v[24:27] offset:{full*4096}")
    A("  s_mov_b64 exec, -1")
    A(f"  v_cmp_gt_u32 vcc, {7*32}, v{vT}")
    A("  s_mov_b64 exec, vcc")
    A("  ds_write_b32 v30, v29")
    A("  s_mov_b64 exec, -1")

def addr_init(A):
    A(f"  v_and_b32 v10, 63, v{vT}")
    A("  v_and_b32 v11, 31, v10")
    A("  v_lshrrev_b32 v12, 5, v10")
    A("  v_and_b32 v13, 7, v11")
    A(f"  v_mul_u32_u24 v{aH}, 1056, v13")
    A("  v_lshrrev_b32 v13, 3, v11")
    A(f"  v_lshl_add_u32 v{aH}, v13, 8, v{aH}")
    A("  v_and_b32 v13, 1, v13")
    A("  v_xor_b32 v13, v13, v12")
    A(f"  v_lshl_add_u32 v{aH}, v13, 4, v{aH}")
    A(f"  v_add_u32 v{aH}, {RING}, v{aH}")
    A("  v_bfe_u32 v13, v10, 2, 2")
    A("  v_lshl_add_u32 v14, v12, 2, v13")
    A(f"  v_mul_u32_u24 v{aV}, 3072, v14")
    A("  v_xor_b32 v13, s36, v13")
    A(f"  v_lshl_add_u32 v{aV}, v13, 6, v{aV}")
    A("  v_and_b32 v13, 1, v10")
    A(f"  v_lshl_add_u32 v{aV}, v13, 5, v{aV}")
    A("  v_bfe_u32 v13, v10, 4, 1")
    A(f"  v_lshl_add_u32 v{aV}, v13, 4, v{aV}")
    A("  v_bfe_u32 v13, v10, 1, 1")
    A(f"  v_lshl_add_u32 v{aV}, v13, 3, v{aV}")
    A(f"  v_add_u32 v{aV}, {VOFF + RING}, v{aV}")
    A("  v_mul_u32_u24 v13, 25, v12")
    A("  v_add_u32 v13, v13, v11")
    A(f"  v_lshlrev_b32 v{aS}, 4, v13")
    A(f"  v_add_u32 v{aS}, {SEL}, v{aS}")
    A(f"  v_lshlrev_b32 v{aG}, 3, v11")
    A(f"  v_add_u32 v{aG}, {GB}, v{aG}")
    A(f"  v_lshlrev_b32 v{aR}, 4, v12")
    A(f"  v_add_u32 v{aR}, {RB}, v{aR}")
    A("  v_lshrrev_b32 v13, 4, v10")
    A(f"  v_lshlrev_b32 v{aL}, 5, v13")
    A("  s_lshl_b32 s52, s36, 3")
    A(f"  s_add_u32 s52, s52, {LIST}")
    A(f"  v_add_u32 v{aL}, s52, v{aL}")
    A("  v_and_b32 v14, 15, v10")
    A("  v_and_b32 v15, 1, v13")
    A("  v_xor_b32 v15, v15, v14")
    A(f"  v_lshlrev_b32 v{cH}, 4, v15")
    for (reg, add) in ((cV0, 0), (cV1, 1)):
        A("  s_lshl_b32 s52, s36, 1")
        if add: A("  s_add_u32 s52, s52, 1")
        A("  s_and_b32 s52, s52, 3")
        A("  v_lshrrev_b32 v15, 2, v14")
        A("  v_xor_b32 v15, s52, v15")
        A("  v_lshlrev_b32 v15, 2, v15")
        A("  v_and_b32 v13, 3, v14")
        A("  v_add_u32 v15, v15, v13")
        A(f"  v_lshlrev_b32 v{reg}, 4, v15")

_uid = [0]
def issue_item(A, kreg, lreg_is_current):
    u = _uid[0]; _uid[0] += 1
    A(f"  s_and_b32 s56, {kreg}, 1")
    A(f"  s_mul_i32 s56, s56, {SLOTSZ}")
    A(f"  s_add_u32 s56, s56, {RING}")
    A(f"  s_cmp_lt_u32 {kreg}, s37")
    A(f"  s_cbranch_scc1 K2_GATH{u}")
    A(f"  s_cmp_lg_u32 {kreg}, s37")
    A(f"  s_cbranch_scc1 K2_ITEMDONE{u}")
    A("  s_cmp_eq_u32 s53, 0")
    A(f"  s_cbranch_scc1 K2_ITEMDONE{u}")
    A(f"  v_and_b32 v10, 63, v{vT}")
    A("  v_lshlrev_b32 v10, 4, v10")
    A(f"  s_mul_i32 s57, s2, {BN}")
    A("  s_add_u32 s57, s57, s36")
    A("  s_lshl_b32 s57, s57, 10")
    A("  s_lshl_b32 s58, s36, 10")
    A("  s_add_u32 s56, s56, s58")
    for i in range(8):
        A(f"  s_add_u32 m0, s56, {i*4096}")
        if i < 6:
            A(f"  s_add_u32 s58, s57, {i*4096}")
        elif i == 6:
            A(f"  s_add_u32 s58, s57, {i*4096}")
            A("  s_cmp_eq_u32 s36, 0")
            A("  s_cselect_b32 s58, s58, 0x7f000000")
        else:
            A("  s_mov_b32 s58, 0x7f000000")
        A(f"  buffer_load_dwordx4 v10, s[16:19], s58 offen lds")
    A(f"  s_branch K2_ITEMDONE{u}")
    A(f"K2_GATH{u}:")
    A(f"  ds_read_b64 v[10:11], v{aL}")
    A(f"  s_mul_i32 s57, s36, 2112")
    A("  s_add_u32 s57, s57, s56")
    A(f"  s_mul_i32 s58, s36, 6144")
    A("  s_add_u32 s58, s58, s56")
    A(f"  s_add_u32 s58, s58, {VOFF}")
    A("  s_waitcnt lgkmcnt(0)")
    A("  v_and_b32 v10, s60, v10")
    A("  v_and_b32 v11, s60, v11")
    A(f"  v_lshl_add_u32 v12, v10, 8, v{cH}")
    A(f"  v_lshl_add_u32 v13, v11, 8, v{cH}")
    A(f"  v_lshl_add_u32 v14, v10, 10, v{cV0}")
    A(f"  v_lshl_add_u32 v15, v11, 10, v{cV1}")
    A("  s_mov_b32 m0, s57")
    A("  s_nop 0")
    A("  buffer_load_dwordx4 v12, s[20:23], 0 offen lds")
    A("  s_add_u32 m0, s57, 1056")
    A("  s_nop 0")
    A("  buffer_load_dwordx4 v13, s[20:23], 0 offen lds")
    for jj, vr in ((0, 14), (1, 15)):
        for c in range(3):
            A(f"  s_add_u32 m0, s58, {jj*3072 + c*1024}")
            A("  s_nop 0")
            A(f"  buffer_load_dwordx4 v{vr}, s[16:19], s{42+c} offen lds")
    A(f"K2_ITEMDONE{u}:")

def rnd(A, dst, a, b=None):
    A(f"  v_cvt_pk_bf16_f32 v{dst}, v{a}, v{b if b is not None else a}")

def gen_k2(A):
    A(".globl k2_kernel\n.p2align 8\n.type k2_kernel,@function\nk2_kernel:")
    A(f"  s_cmp_ge_u32 s2, {NBK}\n  s_cbranch_scc1 K2_END")
    A("  s_load_dwordx4 s[4:7], s[0:1], 0")
    A("  s_load_dwordx2 s[8:9], s[0:1], 32")
    A("  s_load_dwordx2 s[10:11], s[0:1], 64")
    A("  s_load_dwordx2 s[12:13], s[0:1], 80")
    A(f"  v_lshrrev_b32 v10, 6, v{vT}")
    A("  s_nop 0")
    A("  v_readfirstlane_b32 s36, v10")
    lds_fill(A, "a")
    A("  s_mov_b32 s41, 0xffff0000")
    A("  s_movk_i32 s42, 256\n  s_movk_i32 s43, 512\n  s_movk_i32 s44, 768")
    A("  s_movk_i32 s60, 0x3fff")
    A("  s_mov_b32 s40, 0")
    A("  s_waitcnt lgkmcnt(0)")
    srd(A, 16, 4, 5, N*1024)
    srd(A, 20, 12, 13, H_BYTES)
    srd(A, 24, 12, 13, WS_USED)
    srd(A, 28, 6, 7, N*6)
    srd(A, 32, 10, 11, N*1024)
    A("  s_load_dwordx2 s[54:55], s[8:9], 0")
    A(f"  v_mul_u32_u24 v33, {NBK*16}, v{vT}")
    A("  s_lshl_b32 s52, s2, 4")
    A(f"  s_add_u32 s52, s52, {WS_CELL}")
    A(f"  v_cmp_gt_u32 vcc, {NCH}, v{vT}\n  s_mov_b64 s[62:63], vcc")
    A("  v_mov_b32 v36, 0\n  v_mov_b32 v37, 0\n  v_mov_b32 v38, 0\n  v_mov_b32 v39, 0")
    A("  s_mov_b64 exec, s[62:63]")
    A("  buffer_load_dwordx4 v[36:39], v33, s[24:27], s52 offen")
    A("  s_mov_b64 exec, -1")
    A(f"  v_and_b32 v10, 63, v{vT}")
    A("  v_lshlrev_b32 v11, 4, v10")
    A("  v_lshlrev_b32 v12, 3, v10")
    A("  s_mul_i32 s56, s36, 24576")
    A(f"  s_add_u32 s56, s56, {WS_W2}")
    for f in range(24):
        if f % 4 == 0 and f > 0: A("  s_add_u32 s56, s56, 4096")
        A(f"  buffer_load_dwordx4 {r4(W2+4*f)}, v11, s[24:27], s56 offen offset:{(f%4)*1024}")
    A("  s_mul_i32 s56, s36, 1536")
    A(f"  s_add_u32 s56, s56, {WS_WR}")
    for p in range(3):
        A(f"  buffer_load_dwordx2 {r2(WR+2*p)}, v12, s[24:27], s56 offen offset:{p*512}")
    for r in range(ACC, ACC+64): A(f"  v_mov_b32 v{r}, 0")
    addr_init(A)
    A("  s_waitcnt lgkmcnt(0)")
    A("  s_barrier")
    A("  s_lshl_b32 s48, s54, 16\n  s_and_b32 s49, s54, s41\n  s_lshl_b32 s50, s55, 16\n  s_and_b32 s51, s55, s41")
    A("  s_waitcnt vmcnt(27)")
    A("  s_branch K2_CELLS")
    A("K2_ROUND:")
    lds_fill(A, "b")
    addr_init(A)
    A(f"  v_mul_u32_u24 v33, {NBK*16}, v{vT}")
    A("  s_lshl_b32 s52, s2, 4")
    A(f"  s_add_u32 s52, s52, {WS_CELL}")
    A("  v_mov_b32 v36, 0\n  v_mov_b32 v37, 0\n  v_mov_b32 v38, 0\n  v_mov_b32 v39, 0")
    A("  s_mov_b64 exec, s[62:63]")
    A("  buffer_load_dwordx4 v[36:39], v33, s[24:27], s52 offen")
    A("  s_mov_b64 exec, -1")
    A("  s_waitcnt vmcnt(0) lgkmcnt(0)")
    A("  s_barrier")
    A("K2_CELLS:")
    A("  s_mov_b32 s61, 0x7ffff")
    A("  v_and_b32 v40, s61, v36")
    A("  v_alignbit_b32 v41, v37, v36, 19")
    A("  v_lshrrev_b32 v42, 6, v37")
    A("  v_alignbit_b32 v43, v38, v37, 25")
    A("  v_lshrrev_b32 v44, 12, v38")
    A("  v_alignbit_b32 v45, v39, v38, 31")
    for r in range(41, 46): A(f"  v_and_b32 v{r}, s61, v{r}")
    A("  v_lshrrev_b32 v46, 18, v39")
    A("  v_and_b32 v47, 7, v46")
    A("  v_lshrrev_b32 v46, 3, v46")
    A("  v_mov_b32 v34, v47")
    A("  v_mov_b32 v35, v47")
    A("  v_cmp_eq_u32 vcc, 7, v47")
    A("  s_mov_b64 s[64:65], vcc")
    A("  s_cmp_eq_u64 s[64:65], 0")
    A("  s_cbranch_scc1 K2_NOOVF1")
    A(f"  v_mul_u32_u24 v48, {OVF_STRIDE}, v{vT}")
    A("  v_lshl_add_u32 v48, v46, 2, v48")
    A(f"  s_mov_b32 s52, {WS_OVF}")
    A("  s_mov_b64 exec, s[64:65]")
    A("  buffer_load_dword v34, v48, s[24:27], s52 offen")
    A("  v_mov_b32 v35, 0")
    A("  s_waitcnt vmcnt(0)")
    A(f"  v_min_u32 v34, {CH}, v34")
    A("  s_mov_b64 exec, -1")
    A("K2_NOOVF1:")
    A("  v_mov_b32 v49, v34")
    A("  s_nop 1")
    for sh in (1, 2, 4, 8):
        A(f"  v_add_u32_dpp v49, v49, v49 row_shr:{sh} row_mask:0xf bank_mask:0xf bound_ctrl:0")
        A("  s_nop 1")
    A("  v_add_u32_dpp v49, v49, v49 row_bcast:15 row_mask:0xa bank_mask:0xf")
    A("  s_nop 1")
    A("  v_add_u32_dpp v49, v49, v49 row_bcast:31 row_mask:0xc bank_mask:0xf")
    A("  s_nop 1")
    A("  v_readlane_b32 s52, v49, 63")
    A("  v_sub_u32 v49, v49, v34")
    A("  s_lshl_b32 s56, s36, 2")
    A(f"  s_add_u32 s56, s56, {TOT}")
    A("  v_mov_b32 v50, s56")
    A("  v_mov_b32 v51, s52")
    A("  ds_write_b32 v50, v51")
    A("  s_waitcnt lgkmcnt(0)")
    A("  s_barrier")
    A(f"  v_mov_b32 v50, {TOT}")
    A("  ds_read_b128 v[52:55], v50")
    A("  s_waitcnt lgkmcnt(0)")
    for i in range(4): A(f"  v_readfirstlane_b32 s{64+2+i}, v{52+i}")
    A("  s_nop 3")
    A("  s_add_u32 s39, s66, s67\n  s_add_u32 s39, s39, s68\n  s_add_u32 s39, s39, s69")
    A("  s_mov_b32 s56, 0")
    A("  s_cmp_gt_u32 s36, 0\n  s_cselect_b32 s57, s66, 0\n  s_add_u32 s56, s56, s57")
    A("  s_cmp_gt_u32 s36, 1\n  s_cselect_b32 s57, s67, 0\n  s_add_u32 s56, s56, s57")
    A("  s_cmp_gt_u32 s36, 2\n  s_cselect_b32 s57, s68, 0\n  s_add_u32 s56, s56, s57")
    A("  s_sub_u32 s56, s56, s40")
    A("  v_add_u32 v49, s56, v49")
    A("  s_sub_u32 s57, s39, s40")
    A(f"  s_cmp_le_u32 s57, {LCAP}")
    A("  s_cselect_b32 s53, 1, 0")
    A(f"  s_min_u32 s45, s57, {LCAP}")
    A("  s_add_u32 s37, s45, 31\n  s_lshr_b32 s37, s37, 5")
    for i in range(CAP):
        A(f"  v_add_u32 v50, {i}, v49")
        A(f"  v_cmp_lt_u32 vcc, {i}, v35")
        if i == 0: A(f"  s_movk_i32 s58, {LCAP}")
        A(f"  v_cmp_gt_u32 s[70:71], s58, v50")
        A("  v_lshlrev_b32 v50, 2, v50")
        A("  s_and_b64 exec, vcc, s[70:71]")
        A(f"  ds_write_b32 v50, v{40+i} offset:{LIST}")
        A("  s_mov_b64 exec, -1")
    A("  s_cmp_eq_u64 s[64:65], 0")
    A("  s_cbranch_scc1 K2_NOOVF2")
    A("  v_sub_u32 v50, 0, v49")
    A("  v_max_i32 v50, 0, v50")
    A("K2_OVL:")
    A("  v_add_u32 v51, v49, v50")
    A("  v_cmp_lt_u32 vcc, v50, v34")
    A("  v_cmp_gt_u32 s[70:71], s58, v51")
    A("  s_and_b64 vcc, vcc, s[70:71]")
    A("  s_and_b64 exec, vcc, s[64:65]")
    A("  s_cbranch_execz K2_OVLEND")
    A("  v_add_u32 v52, 1, v50")
    A("  v_lshl_add_u32 v52, v52, 2, v48")
    A(f"  s_mov_b32 s52, {WS_OVF}")
    A("  buffer_load_dword v53, v52, s[24:27], s52 offen")
    A("  v_lshlrev_b32 v51, 2, v51")
    A("  s_waitcnt vmcnt(0)")
    A(f"  ds_write_b32 v51, v53 offset:{LIST}")
    A("  v_add_u32 v50, 1, v50")
    A("  s_mov_b64 exec, -1")
    A("  s_branch K2_OVL")
    A("K2_OVLEND:")
    A("  s_mov_b64 exec, -1")
    A("K2_NOOVF2:")
    A("  s_waitcnt lgkmcnt(0)")
    A("  s_barrier")
    A(f"  v_lshlrev_b32 v33, 2, v{vT}")
    A(f"  v_min_u32 v33, {4*(LCAP-1)}, v33")
    A(f"  ds_read_b32 v34, v33 offset:{LIST}")
    A("  s_waitcnt lgkmcnt(0)")
    A("  v_and_b32 v35, s60, v34")
    A("  v_lshrrev_b32 v36, 14, v34")
    A(f"  s_mul_i32 s56, s2, {BN}")
    A("  v_add_u32 v37, s56, v36")
    for (idx, ad, sh, dd) in ((35, 38, 39, 40), (37, 42, 43, 44)):
        A(f"  v_mul_u32_u24 v{ad}, 6, v{idx}")
        A(f"  v_and_b32 v{sh}, 2, v{ad}")
        A(f"  v_and_b32 v{ad}, -4, v{ad}")
        A(f"  v_lshlrev_b32 v{sh}, 3, v{sh}")
        A(f"  buffer_load_dwordx2 v[{dd}:{dd+1}], v{ad}, s[28:31], 0 offen")
    A("  s_mov_b32 s46, 0")
    issue_item(A, "s46", True)
    A(f"  v_add_u32 v{aL}, 128, v{aL}")
    A("  s_mov_b32 s46, 1")
    issue_item(A, "s46", True)
    A(f"  v_add_u32 v{aL}, 128, v{aL}")
    A("  s_cmp_ge_u32 s37, 1")
    A("  s_cbranch_scc0 K2_W8")
    A("  s_waitcnt vmcnt(16)")
    A("  s_branch K2_GEO")
    A("K2_W8:")
    A("  s_waitcnt vmcnt(8)")
    A("K2_GEO:")
    for (p, sh, o) in ((40, 39, 46), (44, 43, 49)):
        A(f"  v_alignbit_b32 v52, v{p+1}, v{p}, v{sh}")
        A(f"  v_lshrrev_b32 v{o+2}, v{sh}, v{p+1}")
        A(f"  v_lshlrev_b32 v{o}, 16, v52")
        A(f"  v_and_b32 v{o+1}, s41, v52")
        A(f"  v_lshlrev_b32 v{o+2}, 16, v{o+2}")
    for k in range(3): A(f"  v_sub_f32 v{46+k}, v{46+k}, v{49+k}")
    rnd(A, 52, 46, 47); rnd(A, 53, 48)
    A("  v_lshlrev_b32 v46, 16, v52\n  v_and_b32 v47, s41, v52\n  v_lshlrev_b32 v48, 16, v53")
    for k in range(3): A(f"  v_mul_f32 v{49+k}, v{46+k}, v{46+k}")
    rnd(A, 52, 49, 50); rnd(A, 53, 51)
    A("  v_lshlrev_b32 v49, 16, v52\n  v_and_b32 v50, s41, v52\n  v_lshlrev_b32 v51, 16, v53")
    A("  v_add_f32 v49, v49, v50\n  v_add_f32 v49, v49, v51")
    rnd(A, 52, 49)
    A("  v_lshlrev_b32 v49, 16, v52")
    A("  v_add_f32 v49, 0x322bcc77, v49")
    rnd(A, 52, 49)
    A("  v_lshlrev_b32 v49, 16, v52")
    A("  v_sqrt_f32 v49, v49")
    A("  s_nop 0")
    rnd(A, 52, 49)
    A("  v_lshlrev_b32 v49, 16, v52")
    A("  v_rcp_f32 v50, v49")
    for k in range(4): A(f"  v_mul_f32 v{52+k}, s{48+k}, v49")
    rnd(A, 56, 52, 53); rnd(A, 57, 54, 55)
    A("  v_lshlrev_b32 v52, 16, v56\n  v_and_b32 v53, s41, v56\n  v_lshlrev_b32 v54, 16, v57\n  v_and_b32 v55, s41, v57")
    for k in range(4): A(f"  v_mul_f32 v{52+k}, 0.15915494, v{52+k}")
    for k in range(4): A(f"  v_fract_f32 v{52+k}, v{52+k}")
    for k in range(4): A(f"  v_sin_f32 v{52+k}, v{52+k}")
    A("  v_mul_f32 v58, 0x40490fdb, v49")
    rnd(A, 59, 58)
    A("  v_lshlrev_b32 v58, 16, v59")
    A("  v_mul_f32 v58, 0x3e4ccccd, v58")
    rnd(A, 59, 58)
    A("  v_lshlrev_b32 v58, 16, v59")
    A("  v_mul_f32 v58, 0.15915494, v58")
    A("  v_cos_f32 v58, v58")
    rnd(A, 56, 52, 53); rnd(A, 57, 54, 55)
    A("  v_lshlrev_b32 v52, 16, v56\n  v_and_b32 v53, s41, v56\n  v_lshlrev_b32 v54, 16, v57\n  v_and_b32 v55, s41, v57")
    for k in range(4): A(f"  v_mul_f32 v{52+k}, v{52+k}, v50")
    rnd(A, 56, 52, 53); rnd(A, 57, 54, 55)
    rnd(A, 59, 58)
    A("  v_lshlrev_b32 v58, 16, v59")
    A("  v_add_f32 v58, 1.0, v58")
    rnd(A, 59, 58)
    A("  v_lshlrev_b32 v58, 16, v59")
    A("  v_mul_f32 v58, 0.5, v58")
    rnd(A, 59, 58)
    A("  v_mov_b32 v60, 0x40a00000")
    A("  v_cmp_lt_f32 vcc, v49, v60")
    A("  s_nop 1")
    A("  v_cndmask_b32 v59, 0, v59, vcc")
    for k in range(3): A(f"  v_mul_f32 v{46+k}, v{46+k}, v50")
    rnd(A, 52, 46, 47); rnd(A, 53, 48)
    A("  v_lshlrev_b32 v46, 16, v52\n  v_and_b32 v47, s41, v52\n  v_lshlrev_b32 v48, 16, v53")
    A(f"  v_lshrrev_b32 v60, 5, v{vT}")
    A(f"  v_and_b32 v61, 31, v{vT}")
    A(f"  v_lshlrev_b32 v62, 3, v{vT}")
    A("  v_mul_u32_u24 v63, 1600, v60")
    A("  v_lshrrev_b32 v64, 4, v61")
    A("  v_bfe_u32 v65, v61, 2, 1")
    A("  v_lshl_add_u32 v64, v64, 1, v65")
    A("  v_mul_u32_u24 v64, 25, v64")
    A("  v_add_u32 v64, v64, v36")
    A("  v_lshl_add_u32 v63, v64, 4, v63")
    A("  v_bfe_u32 v64, v61, 3, 1")
    A("  v_lshl_add_u32 v63, v64, 3, v63")
    A("  v_and_b32 v64, 3, v61")
    A("  v_lshl_add_u32 v63, v64, 1, v63")
    A("  v_mul_u32_u24 v64, 384, v60")
    A("  v_lshl_add_u32 v64, v61, 2, v64")
    A(f"  v_cmp_gt_u32 vcc, s45, v{vT}")
    A("  s_mov_b64 exec, vcc")
    A(f"  ds_write_b64 v62, v[56:57] offset:{GB}" if GB < 65536 else f"  v_add_u32 v62, {GB}, v62\n  ds_write_b64 v62, v[56:57]")
    A(f"  v_add_u32 v63, {SEL}, v63")
    A("  ds_write_b16 v63, v59")
    A(f"  v_add_u32 v64, {RB}, v64")
    for c in range(3): A(f"  ds_write_b32 v64, v{46+c} offset:{c*128}")
    A("  s_mov_b64 exec, -1")
    A("  s_mov_b32 s38, 0")
    A(f"  s_mov_b32 s47, {SLOTSZ}")
    A("  s_cmp_eq_u32 s37, 0")
    A("  s_cbranch_scc1 K2_LOOPEND")
    A("  s_waitcnt vmcnt(8) lgkmcnt(0)")
    A("  s_branch K2_BAR")
    A("K2_LOOP:")
    A("  s_waitcnt vmcnt(0)")
    A("K2_BAR:")
    A("  s_barrier")
    A(f"  ds_read_b64 {r2(GF)}, v{aG}")
    A(f"  ds_read_b128 {r4(HF)}, v{aH}")
    A(f"  ds_read_b128 {r4(HF+4)}, v{aH} offset:32")
    A("  s_cmp_eq_u32 s38, 0")
    A("  s_cbranch_scc1 K2_NOISSUE")
    A("  s_add_u32 s46, s38, 1")
    issue_item(A, "s46", True)
    A(f"  v_add_u32 v{aL}, 128, v{aL}")
    A("K2_NOISSUE:")
    A("  s_waitcnt lgkmcnt(0)")
    A(f"  v_mfma_f32_32x32x8_bf16 {r16(WF)}, {r2(GF)}, {r2(WR)}, 0")
    for ks in range(8):
        hf = HF + 4*(ks & 1)
        if ks >= 1:
            A(f"  s_waitcnt lgkmcnt({1 if ks < 7 else 0})")
        for p, ph in enumerate((PS, PV, PR)):
            c = "0" if ks == 0 else r16(ph)
            A(f"  v_mfma_f32_32x32x16_bf16 {r16(ph)}, {r4(hf)}, {r4(W2 + (p*8+ks)*4)}, {c}")
        if ks + 2 < 8:
            A(f"  ds_read_b128 {r4(hf)}, v{aH} offset:{(ks+2)*32}")
    A(f"  ds_read_b128 {r4(HF)}, v{aS}")
    A(f"  ds_read_b128 {r4(HF+4)}, v{aS} offset:800")
    A("  s_nop 7")
    A("  s_nop 1")
    for r in range(16): A(f"  v_mul_f32 v{PS+r}, v{PS+r}, v{WF+r}")
    A(f"  v_mfma_f32_32x32x8_bf16 {r16(WF)}, {r2(GF)}, {r2(WR+2)}, 0")
    for q in range(8): A(f"  v_cvt_pk_bf16_f32 v{PS+q}, v{PS+2*q}, v{PS+2*q+1}")
    A("  s_waitcnt lgkmcnt(0)")
    A("  s_nop 0")
    A(f"  v_mfma_f32_32x32x16_bf16 {r16(ACC)}, {r4(PS)}, {r4(HF)}, {r16(ACC)}")
    A(f"  v_mfma_f32_32x32x16_bf16 {r16(ACC)}, {r4(PS+4)}, {r4(HF+4)}, {r16(ACC)}")
    A("  s_nop 1")
    for r in range(16): A(f"  v_mul_f32 v{PV+r}, v{PV+r}, v{WF+r}")
    A(f"  v_mfma_f32_32x32x8_bf16 {r16(WF)}, {r2(GF)}, {r2(WR+4)}, 0")
    def ldv(c, g, base):
        A(f"  ds_read_b64_tr_b16 {r2(base)}, v{aV} offset:{c*1024 + g*256}")
        A(f"  ds_read_b128 {r4(base+2)}, v{aR} offset:{c*128 + g*32}")
    A("  s_nop 7")
    A("  s_nop 3")
    for r in range(16): A(f"  v_mul_f32 v{PR+r}, v{PR+r}, v{WF+r}")
    seq = [(c, g) for c in range(3) for g in range(4)]
    bufs = [WF, WF+8]
    ldv(*seq[0], bufs[0])
    ldv(*seq[1], bufs[1])
    for idx, (c, g) in enumerate(seq):
        b = bufs[idx & 1]
        last = idx + 2 >= len(seq)
        A(f"  s_waitcnt lgkmcnt({0 if idx == len(seq)-1 else 2})")
        U = PS + 8
        A(f"  v_lshlrev_b32 v{U}, 16, v{b}")
        A(f"  v_and_b32 v{U+1}, s41, v{b}")
        A(f"  v_lshlrev_b32 v{U+2}, 16, v{b+1}")
        A(f"  v_and_b32 v{U+3}, s41, v{b+1}")
        for i in range(4): A(f"  v_mul_f32 v{U+i}, v{U+i}, v{PV+4*g+i}")
        for i in range(4): A(f"  v_fmac_f32 v{U+i}, v{PR+4*g+i}, v{b+2+i}")
        if not last:
            ldv(*seq[idx+2], b)
        fr = PS + 4*(g >> 1) + 2*(g & 1)
        A(f"  v_cvt_pk_bf16_f32 v{fr}, v{U}, v{U+1}")
        A(f"  v_cvt_pk_bf16_f32 v{fr+1}, v{U+2}, v{U+3}")
        if g & 1:
            t = g >> 1
            A("  s_nop 1")
            acc = ACC + 16*(c+1)
            A(f"  v_mfma_f32_32x32x16_bf16 {r16(acc)}, {r4(PS+4*t)}, {r4(HF+4*t)}, {r16(acc)}")
    A(f"  v_add_u32 v{aH}, s47, v{aH}")
    A(f"  v_add_u32 v{aV}, s47, v{aV}")
    A("  s_sub_u32 s47, 0, s47")
    A(f"  v_add_u32 v{aS}, {SEL_R}, v{aS}")
    A(f"  v_add_u32 v{aG}, {G_R}, v{aG}")
    A(f"  v_add_u32 v{aR}, {R_R}, v{aR}")
    A("  s_add_u32 s38, s38, 1")
    A("  s_cmp_lt_u32 s38, s37")
    A("  s_cbranch_scc1 K2_LOOP")
    A("K2_LOOPEND:")
    A("  s_cmp_lg_u32 s53, 0")
    A("  s_cbranch_scc1 K2_EPI")
    A(f"  s_add_u32 s40, s40, {LCAP}")
    A("  s_waitcnt vmcnt(0) lgkmcnt(0)")
    A("  s_barrier")
    A("  s_branch K2_ROUND")
    A("K2_EPI:")
    A("  s_waitcnt vmcnt(0) lgkmcnt(0)")
    A("  s_barrier")
    A("  s_and_b32 s56, s37, 1")
    A(f"  s_mul_i32 s57, s56, {SLOTSZ}")
    A(f"  s_sub_u32 s58, {SLOTSZ + RING}, s57")
    A(f"  s_add_u32 s57, s57, {RING}")
    A(f"  v_and_b32 v10, 63, v{vT}")
    A("  v_and_b32 v11, 31, v10")
    A("  v_lshrrev_b32 v12, 5, v10")
    A("  v_mul_u32_u24 v13, 1040, v11")
    A("  v_lshl_add_u32 v13, v12, 5, v13")
    A("  s_lshl_b32 s59, s36, 6")
    A("  s_add_u32 s59, s59, s58")
    A("  v_add_u32 v13, s59, v13")
    A(f"  v_cmp_gt_u32 s[70:71], {BN}, v11")
    A("  s_nop 7")
    for c in range(4):
        a = ACC + 16*c
        for q in range(8): A(f"  v_cvt_pk_bf16_f32 v{24+8*c+q}, v{a+2*q}, v{a+2*q+1}")
    A("  s_mov_b64 exec, s[70:71]")
    for c in range(4):
        A(f"  ds_write_b128 v13, {r4(24+8*c)} offset:{c*256}")
        A(f"  ds_write_b128 v13, {r4(24+8*c+4)} offset:{c*256+16}")
    A("  s_mov_b64 exec, -1")
    A("  s_waitcnt lgkmcnt(0)")
    A("  s_barrier")
    A("  v_lshlrev_b32 v14, 4, v10")
    A("  s_mul_i32 s59, s36, 1040")
    A("  s_add_u32 s59, s59, s58")
    A("  v_add_u32 v15, s59, v14")
    A("  s_lshl_b32 s59, s36, 10")
    A("  s_add_u32 s59, s59, s57")
    A("  v_add_u32 v16, s59, v14")
    A(f"  s_mul_i32 s59, s2, {BN}")
    A("  s_add_u32 s59, s59, s36")
    A("  s_lshl_b32 s59, s59, 10")
    for i in range(7):
        A(f"  ds_read_b128 {r4(24+8*i)}, v15 offset:{i*4160}")
        A(f"  ds_read_b128 {r4(28+8*i)}, v16 offset:{i*4096}")
    for i in range(7):
        d, rs = 24+8*i, 28+8*i
        A(f"  s_waitcnt lgkmcnt({min(15, 2*(6-i))})")
        if i == 6:
            A("  s_cmp_lg_u32 s36, 0")
            A("  s_cbranch_scc1 K2_END")
        for q in range(4):
            A(f"  v_lshlrev_b32 v96, 16, v{d+q}")
            A(f"  v_and_b32 v97, s41, v{d+q}")
            A(f"  v_lshlrev_b32 v98, 16, v{rs+q}")
            A(f"  v_and_b32 v99, s41, v{rs+q}")
            A("  v_add_f32 v96, v96, v98")
            A("  v_add_f32 v97, v97, v99")
            A(f"  v_cvt_pk_bf16_f32 v{100+4*(i&1)+q}, v96, v97")
        A(f"  s_add_u32 s61, s59, {i*4096}")
        A(f"  buffer_store_dwordx4 {r4(100+4*(i&1))}, v14, s[32:35], s61 offen")
    A("K2_END:\n  s_endpgm")
```

```python
import sys
from common import *
from k1 import gen_k1, K1_LDS
from k2 import gen_k2, K2_LDS
L = []
def A(s):
    if s: L.append(s)
hdr = open('standalone__molecular_angular_painn__graph.s.ref').read().split('\n')
for line in hdr:
    if line.startswith('; Override'): break
    A(line)
A(f"; @launch kernel=k1_kernel grid=({K1_GRID},1,1) block=(256,1,1) lds={K1_LDS}")
A(f"; @launch kernel=k2_kernel grid=({NBK},1,1) block=(256,1,1) lds={K2_LDS}")
A('.amdgcn_target "amdgcn-amd-amdhsa--gfx950"')
A(".text")
gen_k1(A)
gen_k2(A)
A('.section .rodata,"a"')
for name, vg in (("k1_kernel", 176), ("k2_kernel", 256)):
    A(".p2align 6")
    A(f".amdhsa_kernel {name}")
    A(f"  .amdhsa_next_free_vgpr {vg}\n  .amdhsa_next_free_sgpr 96\n  .amdhsa_accum_offset {vg}")
    A("  .amdhsa_group_segment_fixed_size 0\n  .amdhsa_kernarg_size 88\n  .amdhsa_user_sgpr_count 2\n  .amdhsa_user_sgpr_kernarg_segment_ptr 1\n  .amdhsa_system_sgpr_workgroup_id_x 1")
    A(".end_amdhsa_kernel")
open(sys.argv[1] if len(sys.argv) > 1 else 'standalone__molecular_angular_painn__graph.s', 'w').write("\n".join(L) + "\n")
```

```python
from common import *
from k1 import srd

HSZ = 8 * 1056
VOFF = HSZ
SLOTSZ = HSZ + 8 * 3072
MB = 0
SEL = MB; SEL_R = 1600
NREG = 6
GB = SEL + NREG * SEL_R; G_R = 256
RB = GB + NREG * G_R; R_R = 384
LIST = RB + NREG * R_R
TOT = LIST + 7 * 128
RING = (TOT + 16 + 63) // 64 * 64
K2_LDS = RING + 2 * SLOTSZ
ZB = LIST - MB
assert ZB % 16 == 0 and K2_LDS <= 81920
LCAP = NREG * 32

vT = 0
aH, aV, aS, aG, aR, aL = 1, 2, 3, 4, 5, 6
cH, cV0, cV1 = 7, 8, 9
t0 = 10
WR = 16
GF = 22
HF = 24
WF = 32
PS, PV, PR = 48, 64, 80
ACC = 96
W2 = 160

def r4(b): return f"v[{b}:{b+3}]"
def r2(b): return f"v[{b}:{b+1}]"
def r16(b): return f"v[{b}:{b+15}]"

def lds_fill(A, tag):
    A(f"  v_mov_b32 v24, 0\n  v_mov_b32 v25, 0\n  v_mov_b32 v26, 0\n  v_mov_b32 v27, 0")
    A(f"  v_lshlrev_b32 v28, 4, v{vT}")
    A(f"  v_add_u32 v28, {MB}, v28")
    n16 = ZB // 16
    full = n16 // 256
    for i in range(full):
        A(f"  ds_write_b128 v28, v[24:27] offset:{i*4096}")
    rem = n16 - full*256
    A(f"  v_mov_b32 v29, 0x3fff")
    A(f"  v_lshlrev_b32 v30, 2, v{vT}")
    A(f"  v_add_u32 v30, {LIST}, v30")
    A(f"  v_cmp_gt_u32 vcc, {rem}, v{vT}")
    A("  s_mov_b64 exec, vcc")
    A(f"  ds_write_b128 v28, v[24:27] offset:{full*4096}")
    A("  s_mov_b64 exec, -1")
    A(f"  v_cmp_gt_u32 vcc, {7*32}, v{vT}")
    A("  s_mov_b64 exec, vcc")
    A("  ds_write_b32 v30, v29")
    A("  s_mov_b64 exec, -1")

def addr_init(A):
    A(f"  v_and_b32 v10, 63, v{vT}")
    A("  v_and_b32 v11, 31, v10")
    A("  v_lshrrev_b32 v12, 5, v10")
    A("  v_and_b32 v13, 7, v11")
    A(f"  v_mul_u32_u24 v{aH}, 1056, v13")
    A("  v_lshrrev_b32 v13, 3, v11")
    A(f"  v_lshl_add_u32 v{aH}, v13, 8, v{aH}")
    A("  v_and_b32 v13, 1, v13")
    A("  v_xor_b32 v13, v13, v12")
    A(f"  v_lshl_add_u32 v{aH}, v13, 4, v{aH}")
    A(f"  v_add_u32 v{aH}, {RING}, v{aH}")
    A("  v_bfe_u32 v13, v10, 2, 2")
    A("  v_lshl_add_u32 v14, v12, 2, v13")
    A(f"  v_mul_u32_u24 v{aV}, 3072, v14")
    A("  v_xor_b32 v13, s36, v13")
    A(f"  v_lshl_add_u32 v{aV}, v13, 6, v{aV}")
    A("  v_and_b32 v13, 1, v10")
    A(f"  v_lshl_add_u32 v{aV}, v13, 5, v{aV}")
    A("  v_bfe_u32 v13, v10, 4, 1")
    A(f"  v_lshl_add_u32 v{aV}, v13, 4, v{aV}")
    A("  v_bfe_u32 v13, v10, 1, 1")
    A(f"  v_lshl_add_u32 v{aV}, v13, 3, v{aV}")
    A(f"  v_add_u32 v{aV}, {VOFF + RING}, v{aV}")
    A("  v_mul_u32_u24 v13, 25, v12")
    A("  v_add_u32 v13, v13, v11")
    A(f"  v_lshlrev_b32 v{aS}, 4, v13")
    A(f"  v_add_u32 v{aS}, {SEL}, v{aS}")
    A(f"  v_lshlrev_b32 v{aG}, 3, v11")
    A(f"  v_add_u32 v{aG}, {GB}, v{aG}")
    A(f"  v_lshlrev_b32 v{aR}, 4, v12")
    A(f"  v_add_u32 v{aR}, {RB}, v{aR}")
    A("  v_lshrrev_b32 v13, 4, v10")
    A(f"  v_lshlrev_b32 v{aL}, 5, v13")
    A("  s_lshl_b32 s52, s36, 3")
    A(f"  s_add_u32 s52, s52, {LIST}")
    A(f"  v_add_u32 v{aL}, s52, v{aL}")
    A("  v_and_b32 v14, 15, v10")
    A("  v_and_b32 v15, 1, v13")
    A("  v_xor_b32 v15, v15, v14")
    A(f"  v_lshlrev_b32 v{cH}, 4, v15")
    for (reg, add) in ((cV0, 0), (cV1, 1)):
        A("  s_lshl_b32 s52, s36, 1")
        if add: A("  s_add_u32 s52, s52, 1")
        A("  s_and_b32 s52, s52, 3")
        A("  v_lshrrev_b32 v15, 2, v14")
        A("  v_xor_b32 v15, s52, v15")
        A("  v_lshlrev_b32 v15, 2, v15")
        A("  v_and_b32 v13, 3, v14")
        A("  v_add_u32 v15, v15, v13")
        A(f"  v_lshlrev_b32 v{reg}, 4, v15")

_uid = [0]
def issue_item(A, kreg, lreg_is_current):
    u = _uid[0]; _uid[0] += 1
    A(f"  s_and_b32 s56, {kreg}, 1")
    A(f"  s_mul_i32 s56, s56, {SLOTSZ}")
    A(f"  s_add_u32 s56, s56, {RING}")
    A(f"  s_cmp_lt_u32 {kreg}, s37")
    A(f"  s_cbranch_scc1 K2_GATH{u}")
    A(f"  s_cmp_lg_u32 {kreg}, s37")
    A(f"  s_cbranch_scc1 K2_ITEMDONE{u}")
    A("  s_cmp_eq_u32 s53, 0")
    A(f"  s_cbranch_scc1 K2_ITEMDONE{u}")
    A(f"  v_and_b32 v10, 63, v{vT}")
    A("  v_lshlrev_b32 v10, 4, v10")
    A(f"  s_mul_i32 s57, s2, {BN}")
    A("  s_add_u32 s57, s57, s36")
    A("  s_lshl_b32 s57, s57, 10")
    A("  s_lshl_b32 s58, s36, 10")
    A("  s_add_u32 s56, s56, s58")
    for i in range(8):
        A(f"  s_add_u32 m0, s56, {i*4096}")
        if i < 6:
            A(f"  s_add_u32 s58, s57, {i*4096}")
        elif i == 6:
            A(f"  s_add_u32 s58, s57, {i*4096}")
            A("  s_cmp_eq_u32 s36, 0")
            A("  s_cselect_b32 s58, s58, 0x7f000000")
        else:
            A("  s_mov_b32 s58, 0x7f000000")
        A(f"  buffer_load_dwordx4 v10, s[16:19], s58 offen lds")
    A(f"  s_branch K2_ITEMDONE{u}")
    A(f"K2_GATH{u}:")
    A(f"  ds_read_b64 v[10:11], v{aL}")
    A(f"  s_mul_i32 s57, s36, 2112")
    A("  s_add_u32 s57, s57, s56")
    A(f"  s_mul_i32 s58, s36, 6144")
    A("  s_add_u32 s58, s58, s56")
    A(f"  s_add_u32 s58, s58, {VOFF}")
    A("  s_waitcnt lgkmcnt(0)")
    A("  v_and_b32 v10, s60, v10")
    A("  v_and_b32 v11, s60, v11")
    A(f"  v_lshl_add_u32 v12, v10, 8, v{cH}")
    A(f"  v_lshl_add_u32 v13, v11, 8, v{cH}")
    A(f"  v_lshl_add_u32 v14, v10, 10, v{cV0}")
    A(f"  v_lshl_add_u32 v15, v11, 10, v{cV1}")
    A("  s_mov_b32 m0, s57")
    A("  s_nop 0")
    A("  buffer_load_dwordx4 v12, s[20:23], 0 offen lds")
    A("  s_add_u32 m0, s57, 1056")
    A("  s_nop 0")
    A("  buffer_load_dwordx4 v13, s[20:23], 0 offen lds")
    for jj, vr in ((0, 14), (1, 15)):
        for c in range(3):
            A(f"  s_add_u32 m0, s58, {jj*3072 + c*1024}")
            A("  s_nop 0")
            A(f"  buffer_load_dwordx4 v{vr}, s[16:19], s{42+c} offen lds")
    A(f"K2_ITEMDONE{u}:")

def rnd(A, dst, a, b=None):
    A(f"  v_cvt_pk_bf16_f32 v{dst}, v{a}, v{b if b is not None else a}")

import os
STAMP = int(os.environ.get("STAMP", "0"))
_st = [0]
def stamp(A, idx=None):
    if not STAMP: return
    if idx is None:
        idx = _st[0]; _st[0] += 1
    A("  s_memtime s[94:95]")
    A("  s_waitcnt lgkmcnt(0)")
    A(f"  s_mov_b32 s{72+idx}, s94")
def stamp_dyn(A, base, sreg, maxn):
    if not STAMP: return
    A("  s_memtime s[94:95]")
    A("  s_waitcnt lgkmcnt(0)")
    for k in range(maxn):
        A(f"  s_cmp_eq_u32 {sreg}, {k}")
        A(f"  s_cselect_b32 s{72+base+k}, s94, s{72+base+k}")
def stamp_at(A, idx, it):
    if not STAMP: return
    A("  s_memtime s[94:95]")
    A("  s_waitcnt lgkmcnt(0)")
    A(f"  s_cmp_eq_u32 s38, {it}")
    A(f"  s_cselect_b32 s{72+idx}, s94, s{72+idx}")
def stamp_flush(A, lbl):
    if not STAMP: return
    A("  s_cmp_lg_u32 s36, 0")
    A(f"  s_cbranch_scc1 {lbl}")
    A("  s_lshl_b32 s56, s2, 7")
    A("  s_add_u32 s56, s56, 0x1000000")
    A("  s_mov_b32 s26, 0x2000000")
    A("  v_mov_b32 v11, 0")
    A("  s_mov_b64 exec, 1")
    for k in range(22):
        A(f"  v_mov_b32 v10, s{72+k}")
        A(f"  buffer_store_dword v10, v11, s[24:27], s56 offen offset:{4*k}")
        A("  s_nop 0")
    A(f"{lbl}:")

def gen_k2(A):
    A(".globl k2_kernel\n.p2align 8\n.type k2_kernel,@function\nk2_kernel:")
    A(f"  s_cmp_ge_u32 s2, {NBK}\n  s_cbranch_scc1 K2_END")
    if STAMP:
        for k in range(22): A(f"  s_mov_b32 s{72+k}, 0")
    stamp(A, 0)
    A("  s_load_dwordx4 s[4:7], s[0:1], 0")
    A("  s_load_dwordx2 s[8:9], s[0:1], 32")
    A("  s_load_dwordx2 s[10:11], s[0:1], 64")
    A("  s_load_dwordx2 s[12:13], s[0:1], 80")
    A(f"  v_lshrrev_b32 v10, 6, v{vT}")
    A("  s_nop 0")
    A("  v_readfirstlane_b32 s36, v10")
    lds_fill(A, "a")
    A("  s_mov_b32 s41, 0xffff0000")
    A("  s_movk_i32 s42, 256\n  s_movk_i32 s43, 512\n  s_movk_i32 s44, 768")
    A("  s_movk_i32 s60, 0x3fff")
    A("  s_mov_b32 s40, 0")
    A("  s_waitcnt lgkmcnt(0)")
    stamp(A, 1)
    srd(A, 16, 4, 5, N*1024)
    srd(A, 20, 12, 13, H_BYTES)
    srd(A, 24, 12, 13, WS_USED)
    srd(A, 28, 6, 7, N*6)
    srd(A, 32, 10, 11, N*1024)
    A("  s_load_dwordx2 s[54:55], s[8:9], 0")
    A(f"  v_mul_u32_u24 v33, {NBK*16}, v{vT}")
    A("  s_lshl_b32 s52, s2, 4")
    A(f"  s_add_u32 s52, s52, {WS_CELL}")
    A(f"  v_cmp_gt_u32 vcc, {NCH}, v{vT}\n  s_mov_b64 s[62:63], vcc")
    A("  v_mov_b32 v36, 0\n  v_mov_b32 v37, 0\n  v_mov_b32 v38, 0\n  v_mov_b32 v39, 0")
    A("  s_mov_b64 exec, s[62:63]")
    A("  buffer_load_dwordx4 v[36:39], v33, s[24:27], s52 offen")
    A("  s_mov_b64 exec, -1")
    A(f"  v_and_b32 v10, 63, v{vT}")
    A("  v_lshlrev_b32 v11, 4, v10")
    A("  v_lshlrev_b32 v12, 3, v10")
    A(f"  s_mul_i32 s56, s36, {W2_WSTRIDE}")
    A(f"  s_add_u32 s56, s56, {WS_W2}")
    for f in range(24):
        if f % 4 == 0 and f > 0: A("  s_add_u32 s56, s56, 4096")
        A(f"  buffer_load_dwordx4 {r4(W2+4*f)}, v11, s[24:27], s56 offen offset:{(f%4)*1024}")
    A("  s_mul_i32 s56, s36, 1536")
    A(f"  s_add_u32 s56, s56, {WS_WR}")
    for p in range(3):
        A(f"  buffer_load_dwordx2 {r2(WR+2*p)}, v12, s[24:27], s56 offen offset:{p*512}")
    for r in range(ACC, ACC+64): A(f"  v_mov_b32 v{r}, 0")
    addr_init(A)
    A("  s_waitcnt lgkmcnt(0)")
    A("  s_barrier")
    A("  s_lshl_b32 s48, s54, 16\n  s_and_b32 s49, s54, s41\n  s_lshl_b32 s50, s55, 16\n  s_and_b32 s51, s55, s41")
    stamp(A, 2)
    A("  s_waitcnt vmcnt(27)")
    stamp(A, 3)
    A("  s_branch K2_CELLS")
    A("K2_ROUND:")
    lds_fill(A, "b")
    addr_init(A)
    A(f"  v_mul_u32_u24 v33, {NBK*16}, v{vT}")
    A("  s_lshl_b32 s52, s2, 4")
    A(f"  s_add_u32 s52, s52, {WS_CELL}")
    A("  v_mov_b32 v36, 0\n  v_mov_b32 v37, 0\n  v_mov_b32 v38, 0\n  v_mov_b32 v39, 0")
    A("  s_mov_b64 exec, s[62:63]")
    A("  buffer_load_dwordx4 v[36:39], v33, s[24:27], s52 offen")
    A("  s_mov_b64 exec, -1")
    A("  s_waitcnt vmcnt(0) lgkmcnt(0)")
    A("  s_barrier")
    A("K2_CELLS:")
    A("  s_mov_b32 s61, 0x7ffff")
    A("  v_and_b32 v40, s61, v36")
    A("  v_alignbit_b32 v41, v37, v36, 19")
    A("  v_lshrrev_b32 v42, 6, v37")
    A("  v_alignbit_b32 v43, v38, v37, 25")
    A("  v_lshrrev_b32 v44, 12, v38")
    A("  v_alignbit_b32 v45, v39, v38, 31")
    for r in range(41, 46): A(f"  v_and_b32 v{r}, s61, v{r}")
    A("  v_lshrrev_b32 v46, 18, v39")
    A("  v_and_b32 v47, 7, v46")
    A("  v_lshrrev_b32 v46, 3, v46")
    A("  v_mov_b32 v34, v47")
    A("  v_mov_b32 v35, v47")
    A("  v_cmp_eq_u32 vcc, 7, v47")
    A("  s_mov_b64 s[64:65], vcc")
    A("  s_cmp_eq_u64 s[64:65], 0")
    A("  s_cbranch_scc1 K2_NOOVF1")
    A(f"  v_mul_u32_u24 v48, {OVF_STRIDE}, v{vT}")
    A("  v_lshl_add_u32 v48, v46, 2, v48")
    A(f"  s_mov_b32 s52, {WS_OVF}")
    A("  s_mov_b64 exec, s[64:65]")
    A("  buffer_load_dword v34, v48, s[24:27], s52 offen")
    A("  v_mov_b32 v35, 0")
    A("  s_waitcnt vmcnt(0)")
    A(f"  v_min_u32 v34, {CH}, v34")
    A("  s_mov_b64 exec, -1")
    A("K2_NOOVF1:")
    A("  v_mov_b32 v49, v34")
    A("  s_nop 1")
    for sh in (1, 2, 4, 8):
        A(f"  v_add_u32_dpp v49, v49, v49 row_shr:{sh} row_mask:0xf bank_mask:0xf bound_ctrl:0")
        A("  s_nop 1")
    A("  v_add_u32_dpp v49, v49, v49 row_bcast:15 row_mask:0xa bank_mask:0xf")
    A("  s_nop 1")
    A("  v_add_u32_dpp v49, v49, v49 row_bcast:31 row_mask:0xc bank_mask:0xf")
    A("  s_nop 1")
    A("  v_readlane_b32 s52, v49, 63")
    A("  v_sub_u32 v49, v49, v34")
    A("  s_lshl_b32 s56, s36, 2")
    A(f"  s_add_u32 s56, s56, {TOT}")
    A("  v_mov_b32 v50, s56")
    A("  v_mov_b32 v51, s52")
    A("  ds_write_b32 v50, v51")
    A("  s_waitcnt lgkmcnt(0)")
    A("  s_barrier")
    A(f"  v_mov_b32 v50, {TOT}")
    A("  ds_read_b128 v[52:55], v50")
    A("  s_waitcnt lgkmcnt(0)")
    for i in range(4): A(f"  v_readfirstlane_b32 s{64+2+i}, v{52+i}")
    A("  s_nop 3")
    A("  s_add_u32 s39, s66, s67\n  s_add_u32 s39, s39, s68\n  s_add_u32 s39, s39, s69")
    A("  s_mov_b32 s56, 0")
    A("  s_cmp_gt_u32 s36, 0\n  s_cselect_b32 s57, s66, 0\n  s_add_u32 s56, s56, s57")
    A("  s_cmp_gt_u32 s36, 1\n  s_cselect_b32 s57, s67, 0\n  s_add_u32 s56, s56, s57")
    A("  s_cmp_gt_u32 s36, 2\n  s_cselect_b32 s57, s68, 0\n  s_add_u32 s56, s56, s57")
    A("  s_sub_u32 s56, s56, s40")
    A("  v_add_u32 v49, s56, v49")
    A("  s_sub_u32 s57, s39, s40")
    A(f"  s_cmp_le_u32 s57, {LCAP}")
    A("  s_cselect_b32 s53, 1, 0")
    A(f"  s_min_u32 s45, s57, {LCAP}")
    A("  s_add_u32 s37, s45, 31\n  s_lshr_b32 s37, s37, 5")
    for i in range(CAP):
        A(f"  v_add_u32 v50, {i}, v49")
        A(f"  v_cmp_lt_u32 vcc, {i}, v35")
        if i == 0: A(f"  s_movk_i32 s58, {LCAP}")
        A(f"  v_cmp_gt_u32 s[70:71], s58, v50")
        A("  v_lshlrev_b32 v50, 2, v50")
        A("  s_and_b64 exec, vcc, s[70:71]")
        A(f"  ds_write_b32 v50, v{40+i} offset:{LIST}")
        A("  s_mov_b64 exec, -1")
    A("  s_cmp_eq_u64 s[64:65], 0")
    A("  s_cbranch_scc1 K2_NOOVF2")
    A("  v_sub_u32 v50, 0, v49")
    A("  v_max_i32 v50, 0, v50")
    A("K2_OVL:")
    A("  v_add_u32 v51, v49, v50")
    A("  v_cmp_lt_u32 vcc, v50, v34")
    A("  v_cmp_gt_u32 s[70:71], s58, v51")
    A("  s_and_b64 vcc, vcc, s[70:71]")
    A("  s_and_b64 exec, vcc, s[64:65]")
    A("  s_cbranch_execz K2_OVLEND")
    A("  v_add_u32 v52, 1, v50")
    A("  v_lshl_add_u32 v52, v52, 2, v48")
    A(f"  s_mov_b32 s52, {WS_OVF}")
    A("  buffer_load_dword v53, v52, s[24:27], s52 offen")
    A("  v_lshlrev_b32 v51, 2, v51")
    A("  s_waitcnt vmcnt(0)")
    A(f"  ds_write_b32 v51, v53 offset:{LIST}")
    A("  v_add_u32 v50, 1, v50")
    A("  s_mov_b64 exec, -1")
    A("  s_branch K2_OVL")
    A("K2_OVLEND:")
    A("  s_mov_b64 exec, -1")
    A("K2_NOOVF2:")
    A("  s_waitcnt lgkmcnt(0)")
    A("  s_barrier")
    stamp(A, 4)
    A(f"  v_lshlrev_b32 v33, 2, v{vT}")
    A(f"  v_min_u32 v33, {4*(LCAP-1)}, v33")
    A(f"  ds_read_b32 v34, v33 offset:{LIST}")
    A("  s_waitcnt lgkmcnt(0)")
    A("  v_and_b32 v35, s60, v34")
    A("  v_lshrrev_b32 v36, 14, v34")
    A(f"  s_mul_i32 s56, s2, {BN}")
    A("  v_add_u32 v37, s56, v36")
    for (idx, ad, sh, dd) in ((35, 38, 39, 40), (37, 42, 43, 44)):
        A(f"  v_mul_u32_u24 v{ad}, 6, v{idx}")
        A(f"  v_and_b32 v{sh}, 2, v{ad}")
        A(f"  v_and_b32 v{ad}, -4, v{ad}")
        A(f"  v_lshlrev_b32 v{sh}, 3, v{sh}")
        A(f"  buffer_load_dwordx2 v[{dd}:{dd+1}], v{ad}, s[28:31], 0 offen")
    A("  s_mov_b32 s46, 0")
    issue_item(A, "s46", True)
    A(f"  v_add_u32 v{aL}, 128, v{aL}")
    A("  s_mov_b32 s46, 1")
    issue_item(A, "s46", True)
    A(f"  v_add_u32 v{aL}, 128, v{aL}")
    A("  s_cmp_ge_u32 s37, 1")
    A("  s_cbranch_scc0 K2_W8")
    A("  s_waitcnt vmcnt(16)")
    A("  s_branch K2_GEO")
    A("K2_W8:")
    A("  s_waitcnt vmcnt(8)")
    A("K2_GEO:")
    stamp(A, 5)
    for (p, sh, o) in ((40, 39, 46), (44, 43, 49)):
        A(f"  v_alignbit_b32 v52, v{p+1}, v{p}, v{sh}")
        A(f"  v_lshrrev_b32 v{o+2}, v{sh}, v{p+1}")
        A(f"  v_lshlrev_b32 v{o}, 16, v52")
        A(f"  v_and_b32 v{o+1}, s41, v52")
        A(f"  v_lshlrev_b32 v{o+2}, 16, v{o+2}")
    for k in range(3): A(f"  v_sub_f32 v{46+k}, v{46+k}, v{49+k}")
    rnd(A, 52, 46, 47); rnd(A, 53, 48)
    A("  v_lshlrev_b32 v46, 16, v52\n  v_and_b32 v47, s41, v52\n  v_lshlrev_b32 v48, 16, v53")
    for k in range(3): A(f"  v_mul_f32 v{49+k}, v{46+k}, v{46+k}")
    rnd(A, 52, 49, 50); rnd(A, 53, 51)
    A("  v_lshlrev_b32 v49, 16, v52\n  v_and_b32 v50, s41, v52\n  v_lshlrev_b32 v51, 16, v53")
    A("  v_add_f32 v49, v49, v50\n  v_add_f32 v49, v49, v51")
    rnd(A, 52, 49)
    A("  v_lshlrev_b32 v49, 16, v52")
    A("  v_add_f32 v49, 0x322bcc77, v49")
    rnd(A, 52, 49)
    A("  v_lshlrev_b32 v49, 16, v52")
    A("  v_sqrt_f32 v49, v49")
    A("  s_nop 0")
    rnd(A, 52, 49)
    A("  v_lshlrev_b32 v49, 16, v52")
    A("  v_rcp_f32 v50, v49")
    for k in range(4): A(f"  v_mul_f32 v{52+k}, s{48+k}, v49")
    rnd(A, 56, 52, 53); rnd(A, 57, 54, 55)
    A("  v_lshlrev_b32 v52, 16, v56\n  v_and_b32 v53, s41, v56\n  v_lshlrev_b32 v54, 16, v57\n  v_and_b32 v55, s41, v57")
    for k in range(4): A(f"  v_mul_f32 v{52+k}, 0.15915494, v{52+k}")
    for k in range(4): A(f"  v_fract_f32 v{52+k}, v{52+k}")
    for k in range(4): A(f"  v_sin_f32 v{52+k}, v{52+k}")
    A("  v_mul_f32 v58, 0x40490fdb, v49")
    rnd(A, 59, 58)
    A("  v_lshlrev_b32 v58, 16, v59")
    A("  v_mul_f32 v58, 0x3e4ccccd, v58")
    rnd(A, 59, 58)
    A("  v_lshlrev_b32 v58, 16, v59")
    A("  v_mul_f32 v58, 0.15915494, v58")
    A("  v_cos_f32 v58, v58")
    rnd(A, 56, 52, 53); rnd(A, 57, 54, 55)
    A("  v_lshlrev_b32 v52, 16, v56\n  v_and_b32 v53, s41, v56\n  v_lshlrev_b32 v54, 16, v57\n  v_and_b32 v55, s41, v57")
    for k in range(4): A(f"  v_mul_f32 v{52+k}, v{52+k}, v50")
    rnd(A, 56, 52, 53); rnd(A, 57, 54, 55)
    rnd(A, 59, 58)
    A("  v_lshlrev_b32 v58, 16, v59")
    A("  v_add_f32 v58, 1.0, v58")
    rnd(A, 59, 58)
    A("  v_lshlrev_b32 v58, 16, v59")
    A("  v_mul_f32 v58, 0.5, v58")
    rnd(A, 59, 58)
    A("  v_mov_b32 v60, 0x40a00000")
    A("  v_cmp_lt_f32 vcc, v49, v60")
    A("  s_nop 1")
    A("  v_cndmask_b32 v59, 0, v59, vcc")
    for k in range(3): A(f"  v_mul_f32 v{46+k}, v{46+k}, v50")
    rnd(A, 52, 46, 47); rnd(A, 53, 48)
    A("  v_lshlrev_b32 v46, 16, v52\n  v_and_b32 v47, s41, v52\n  v_lshlrev_b32 v48, 16, v53")
    A(f"  v_lshrrev_b32 v60, 5, v{vT}")
    A(f"  v_and_b32 v61, 31, v{vT}")
    A(f"  v_lshlrev_b32 v62, 3, v{vT}")
    A("  v_mul_u32_u24 v63, 1600, v60")
    A("  v_lshrrev_b32 v64, 4, v61")
    A("  v_bfe_u32 v65, v61, 2, 1")
    A("  v_lshl_add_u32 v64, v64, 1, v65")
    A("  v_mul_u32_u24 v64, 25, v64")
    A("  v_add_u32 v64, v64, v36")
    A("  v_lshl_add_u32 v63, v64, 4, v63")
    A("  v_bfe_u32 v64, v61, 3, 1")
    A("  v_lshl_add_u32 v63, v64, 3, v63")
    A("  v_and_b32 v64, 3, v61")
    A("  v_lshl_add_u32 v63, v64, 1, v63")
    A("  v_mul_u32_u24 v64, 384, v60")
    A("  v_lshl_add_u32 v64, v61, 2, v64")
    A(f"  v_cmp_gt_u32 vcc, s45, v{vT}")
    A("  s_mov_b64 exec, vcc")
    A(f"  ds_write_b64 v62, v[56:57] offset:{GB}" if GB < 65536 else f"  v_add_u32 v62, {GB}, v62\n  ds_write_b64 v62, v[56:57]")
    A(f"  v_add_u32 v63, {SEL}, v63")
    A("  ds_write_b16 v63, v59")
    A(f"  v_add_u32 v64, {RB}, v64")
    for c in range(3): A(f"  ds_write_b32 v64, v{46+c} offset:{c*128}")
    A("  s_mov_b64 exec, -1")
    stamp(A, 6)
    A("  s_mov_b32 s38, 0")
    A(f"  s_mov_b32 s47, {SLOTSZ}")
    A("  s_cmp_eq_u32 s37, 0")
    A("  s_cbranch_scc1 K2_LOOPEND")
    A("  s_waitcnt vmcnt(8) lgkmcnt(0)")
    A("  s_branch K2_BAR")
    A("K2_LOOP:")
    stamp_at(A, 7, 2); stamp_at(A, 13, 3)
    A("  s_waitcnt vmcnt(0)")
    A("K2_BAR:")
    stamp_at(A, 8, 2); stamp_at(A, 14, 3)
    A("  s_barrier")
    stamp_at(A, 9, 2); stamp_at(A, 15, 3)
    A(f"  ds_read_b64 {r2(GF)}, v{aG}")
    A(f"  ds_read_b128 {r4(HF)}, v{aH}")
    A(f"  ds_read_b128 {r4(HF+4)}, v{aH} offset:32")
    A("  s_cmp_eq_u32 s38, 0")
    A("  s_cbranch_scc1 K2_NOISSUE")
    A("  s_add_u32 s46, s38, 1")
    issue_item(A, "s46", True)
    A(f"  v_add_u32 v{aL}, 128, v{aL}")
    A("K2_NOISSUE:")
    stamp_at(A, 10, 2); stamp_at(A, 16, 3)
    A("  s_waitcnt lgkmcnt(0)")
    A(f"  v_mfma_f32_32x32x8_bf16 {r16(WF)}, {r2(GF)}, {r2(WR)}, 0")
    for ks in range(8):
        hf = HF + 4*(ks & 1)
        if ks >= 1:
            A(f"  s_waitcnt lgkmcnt({1 if ks < 7 else 0})")
        for p, ph in enumerate((PS, PV, PR)):
            c = "0" if ks == 0 else r16(ph)
            A(f"  v_mfma_f32_32x32x16_bf16 {r16(ph)}, {r4(hf)}, {r4(W2 + (p*8+ks)*4)}, {c}")
        if ks + 2 < 8:
            A(f"  ds_read_b128 {r4(hf)}, v{aH} offset:{(ks+2)*32}")
    stamp_at(A, 11, 2); stamp_at(A, 17, 3)
    A(f"  ds_read_b128 {r4(HF)}, v{aS}")
    A(f"  ds_read_b128 {r4(HF+4)}, v{aS} offset:800")
    A("  s_nop 7")
    A("  s_nop 1")
    for r in range(16): A(f"  v_mul_f32 v{PS+r}, v{PS+r}, v{WF+r}")
    A(f"  v_mfma_f32_32x32x8_bf16 {r16(WF)}, {r2(GF)}, {r2(WR+2)}, 0")
    for q in range(8): A(f"  v_cvt_pk_bf16_f32 v{PS+q}, v{PS+2*q}, v{PS+2*q+1}")
    A("  s_waitcnt lgkmcnt(0)")
    A("  s_nop 0")
    A(f"  v_mfma_f32_32x32x16_bf16 {r16(ACC)}, {r4(PS)}, {r4(HF)}, {r16(ACC)}")
    A(f"  v_mfma_f32_32x32x16_bf16 {r16(ACC)}, {r4(PS+4)}, {r4(HF+4)}, {r16(ACC)}")
    A("  s_nop 1")
    for r in range(16): A(f"  v_mul_f32 v{PV+r}, v{PV+r}, v{WF+r}")
    A(f"  v_mfma_f32_32x32x8_bf16 {r16(WF)}, {r2(GF)}, {r2(WR+4)}, 0")
    def ldv(c, g, base):
        A(f"  ds_read_b64_tr_b16 {r2(base)}, v{aV} offset:{c*1024 + g*256}")
        A(f"  ds_read_b128 {r4(base+2)}, v{aR} offset:{c*128 + g*32}")
    A("  s_nop 7")
    A("  s_nop 3")
    for r in range(16): A(f"  v_mul_f32 v{PR+r}, v{PR+r}, v{WF+r}")
    seq = [(c, g) for c in range(3) for g in range(4)]
    bufs = [WF, WF+8]
    ldv(*seq[0], bufs[0])
    ldv(*seq[1], bufs[1])
    for idx, (c, g) in enumerate(seq):
        b = bufs[idx & 1]
        last = idx + 2 >= len(seq)
        A(f"  s_waitcnt lgkmcnt({0 if idx == len(seq)-1 else 2})")
        U = PS + 8
        A(f"  v_lshlrev_b32 v{U}, 16, v{b}")
        A(f"  v_and_b32 v{U+1}, s41, v{b}")
        A(f"  v_lshlrev_b32 v{U+2}, 16, v{b+1}")
        A(f"  v_and_b32 v{U+3}, s41, v{b+1}")
        for i in range(4): A(f"  v_mul_f32 v{U+i}, v{U+i}, v{PV+4*g+i}")
        for i in range(4): A(f"  v_fmac_f32 v{U+i}, v{PR+4*g+i}, v{b+2+i}")
        if not last:
            ldv(*seq[idx+2], b)
        fr = PS + 4*(g >> 1) + 2*(g & 1)
        A(f"  v_cvt_pk_bf16_f32 v{fr}, v{U}, v{U+1}")
        A(f"  v_cvt_pk_bf16_f32 v{fr+1}, v{U+2}, v{U+3}")
        if g & 1:
            t = g >> 1
            A("  s_nop 1")
            acc = ACC + 16*(c+1)
            A(f"  v_mfma_f32_32x32x16_bf16 {r16(acc)}, {r4(PS+4*t)}, {r4(HF+4*t)}, {r16(acc)}")
    stamp_at(A, 12, 2); stamp_at(A, 18, 3)
    A(f"  v_add_u32 v{aH}, s47, v{aH}")
    A(f"  v_add_u32 v{aV}, s47, v{aV}")
    A("  s_sub_u32 s47, 0, s47")
    A(f"  v_add_u32 v{aS}, {SEL_R}, v{aS}")
    A(f"  v_add_u32 v{aG}, {G_R}, v{aG}")
    A(f"  v_add_u32 v{aR}, {R_R}, v{aR}")
    A("  s_add_u32 s38, s38, 1")
    A("  s_cmp_lt_u32 s38, s37")
    A("  s_cbranch_scc1 K2_LOOP")
    A("K2_LOOPEND:")
    A("  s_cmp_lg_u32 s53, 0")
    A("  s_cbranch_scc1 K2_EPI")
    A(f"  s_add_u32 s40, s40, {LCAP}")
    A("  s_waitcnt vmcnt(0) lgkmcnt(0)")
    A("  s_barrier")
    A("  s_branch K2_ROUND")
    A("K2_EPI:")
    stamp(A, 19)
    A("  s_waitcnt vmcnt(0) lgkmcnt(0)")
    A("  s_barrier")
    stamp(A, 20)
    A("  s_and_b32 s56, s37, 1")
    A(f"  s_mul_i32 s57, s56, {SLOTSZ}")
    A(f"  s_sub_u32 s58, {SLOTSZ + RING}, s57")
    A(f"  s_add_u32 s57, s57, {RING}")
    A(f"  v_and_b32 v10, 63, v{vT}")
    A("  v_and_b32 v11, 31, v10")
    A("  v_lshrrev_b32 v12, 5, v10")
    A("  v_mul_u32_u24 v13, 1040, v11")
    A("  v_lshl_add_u32 v13, v12, 5, v13")
    A("  s_lshl_b32 s59, s36, 6")
    A("  s_add_u32 s59, s59, s58")
    A("  v_add_u32 v13, s59, v13")
    A(f"  v_cmp_gt_u32 s[70:71], {BN}, v11")
    A("  s_nop 7")
    for c in range(4):
        a = ACC + 16*c
        for q in range(8): A(f"  v_cvt_pk_bf16_f32 v{24+8*c+q}, v{a+2*q}, v{a+2*q+1}")
    A("  s_mov_b64 exec, s[70:71]")
    for c in range(4):
        A(f"  ds_write_b128 v13, {r4(24+8*c)} offset:{c*256}")
        A(f"  ds_write_b128 v13, {r4(24+8*c+4)} offset:{c*256+16}")
    A("  s_mov_b64 exec, -1")
    A("  s_waitcnt lgkmcnt(0)")
    A("  s_barrier")
    A("  v_lshlrev_b32 v14, 4, v10")
    A("  s_mul_i32 s59, s36, 1040")
    A("  s_add_u32 s59, s59, s58")
    A("  v_add_u32 v15, s59, v14")
    A("  s_lshl_b32 s59, s36, 10")
    A("  s_add_u32 s59, s59, s57")
    A("  v_add_u32 v16, s59, v14")
    A(f"  s_mul_i32 s59, s2, {BN}")
    A("  s_add_u32 s59, s59, s36")
    A("  s_lshl_b32 s59, s59, 10")
    for i in range(7):
        A(f"  ds_read_b128 {r4(24+8*i)}, v15 offset:{i*4160}")
        A(f"  ds_read_b128 {r4(28+8*i)}, v16 offset:{i*4096}")
    for i in range(7):
        d, rs = 24+8*i, 28+8*i
        A(f"  s_waitcnt lgkmcnt({min(15, 2*(6-i))})")
        if i == 6:
            A("  s_cmp_lg_u32 s36, 0")
            A("  s_cbranch_scc1 K2_END")
        for q in range(4):
            A(f"  v_lshlrev_b32 v96, 16, v{d+q}")
            A(f"  v_and_b32 v97, s41, v{d+q}")
            A(f"  v_lshlrev_b32 v98, 16, v{rs+q}")
            A(f"  v_and_b32 v99, s41, v{rs+q}")
            A("  v_add_f32 v96, v96, v98")
            A("  v_add_f32 v97, v97, v99")
            A(f"  v_cvt_pk_bf16_f32 v{100+4*(i&1)+q}, v96, v97")
        A(f"  s_add_u32 s61, s59, {i*4096}")
        A(f"  buffer_store_dwordx4 {r4(100+4*(i&1))}, v14, s[32:35], s61 offen")
    stamp(A, 21)
    stamp_flush(A, "K2_END2")
    A("K2_END:\n  s_endpgm")
```
